```python
import torch

def _softmax(x, axis=-1):
    return torch.softmax(x, dim=axis)

def _gelu(x):
    return torch.nn.functional.gelu(x, approximate='tanh')

def _silu(x):
    return torch.nn.functional.silu(x)

def _sigmoid(x):
    return torch.sigmoid(x)

def _layernorm(x, axis=-1, eps=1e-05):
    m = x.mean(dim=axis, keepdim=True)
    v = x.var(dim=axis, keepdim=True, unbiased=False)
    return (x - m) / torch.sqrt(v + eps)

def _scatter_add(tgt, idx, src, axis=0):
    return tgt.clone().index_add_(axis, idx, src)

def _segment_sum(src, seg, n):
    out = torch.zeros((n,) + src.shape[1:], dtype=src.dtype)
    return out.index_add_(0, seg, src)

def _pad(x, pw):
    flat = tuple((v for pair in reversed(pw) for v in pair))
    return torch.nn.functional.pad(x, flat)
kernel_name = 'adaLN_cond__memory_aug_recurrent_mem_tr__glu_gated_swiglu__prompt'

def setup_inputs():

    _w = lambda a: (lambda t: t.to(torch.bfloat16) if t.is_floating_point() else t)(torch.as_tensor(a))

    def _A_setup():
        B, S, Dm = (1, 2048, 640)
        H, Dh = (32, 192)
        M, seg = (8, 32)
        seg = min(seg, S)
        S = S // seg * seg
        return {'x': _w((lambda *s: torch.randn(*s, dtype=torch.bfloat16) * 0.05)(B, S, Dm)), 'mem0': _w((lambda *s: torch.randn(*s, dtype=torch.bfloat16) * 0.8)(B, M, Dm)), 'Wq': _w((lambda *s: torch.randn(*s, dtype=torch.bfloat16) * 0.8)(Dm, H, Dh) * Dm ** (-0.5)), 'Wk': _w((lambda *s: torch.randn(*s, dtype=torch.bfloat16) * 0.8)(Dm, H, Dh) * Dm ** (-0.5)), 'Wv': _w((lambda *s: torch.randn(*s, dtype=torch.bfloat16) * 0.8)(Dm, H, Dh) * Dm ** (-0.5)), 'Wo': _w((lambda *s: torch.randn(*s, dtype=torch.bfloat16) * 0.8)(H, Dh, Dm) * (H * Dh) ** (-0.5)), 'seg_len': seg}
    _A_in = _A_setup()

    def _B_setup():
        B, S, D, F = (1, 2048, 640, 1536)
        return {'x': _w((lambda *s: torch.randn(*s, dtype=torch.bfloat16) * 0.05)(B, S, D)), 'w1': _w((lambda *s: torch.randn(*s, dtype=torch.bfloat16) * 0.4)(D, F) * (2.0 / D) ** 0.5), 'w3': _w((lambda *s: torch.randn(*s, dtype=torch.bfloat16) * 0.4)(D, F) * (2.0 / D) ** 0.5), 'w2': _w((lambda *s: torch.randn(*s, dtype=torch.bfloat16) * 0.4)(F, D) * (2.0 / F) ** 0.5)}
    _B_in = _B_setup()
    return {'A_x': _A_in['x'], 'A_mem0': _A_in['mem0'], 'A_Wq': _A_in['Wq'], 'A_Wk': _A_in['Wk'], 'A_Wv': _A_in['Wv'], 'A_Wo': _A_in['Wo'], 'A_seg_len': _A_in['seg_len'], 'B_x': _B_in['x'], 'B_w1': _B_in['w1'], 'B_w3': _B_in['w3'], 'B_w2': _B_in['w2'], 'c': _w((lambda *s: torch.randn(*s, dtype=torch.bfloat16) * 0.1)(1, 640) * 8.0), 'w_mod': _w((lambda *s: torch.randn(*s, dtype=torch.bfloat16) * 0.1)(640, 6 * 640) * 640 ** (-0.5) * 8.0)}

def reference(A_x, A_mem0, A_Wq, A_Wk, A_Wv, A_Wo, A_seg_len, B_x, B_w1, B_w3, B_w2, c, w_mod):

    def _A_ref(x, mem0, Wq, Wk, Wv, Wo, seg_len):
        B, S, Dm = x.shape
        H, Dh = (Wq.shape[1], Wq.shape[2])
        M = mem0.shape[1]
        scale = Dh ** (-0.5)
        n_seg = S // seg_len
        L = M + seg_len
        idx = torch.arange(L)
        mask = (idx[:, None] < M) | (idx[:, None] >= idx[None, :])
        mem = mem0
        outs = []
        for s in range(n_seg):
            xs = x[:, s * seg_len:(s + 1) * seg_len, :].clone()
            h = torch.concatenate([mem, xs], axis=1)
            q = torch.einsum('btd,dhe->bhte', h, Wq)
            k = torch.einsum('btd,dhe->bhte', h, Wk)
            v = torch.einsum('btd,dhe->bhte', h, Wv)
            scores = torch.einsum('bhqe,bhke->bhqk', q, k) * scale
            scores = torch.where(mask[None, None], scores, -1000000000.0)
            p = _softmax(scores, axis=-1)
            o = torch.einsum('bhqk,bhke->bhqe', p, v)
            o = torch.einsum('bhte,hed->btd', o, Wo)
            mem = o[:, :M, :].clone()
            outs.append(o[:, M:, :])
        return torch.concatenate(outs, axis=1)

    def _B_ref(x, w1, w3, w2):
        gate = torch.einsum('bsd,df->bsf', x, w1)
        up = torch.einsum('bsd,df->bsf', x, w3)
        h = _silu(gate) * up
        out = torch.einsum('bsf,fd->bsd', h, w2)
        return out
    x = A_x
    mod = (_silu(c) @ w_mod).reshape(c.shape[0], 6, 1, -1)
    sa, ca, ga, sb, cb, gb = (mod[:, 0].clone(), mod[:, 1].clone(), mod[:, 2].clone(), mod[:, 3].clone(), mod[:, 4].clone(), mod[:, 5].clone())
    h = _layernorm(x, axis=-1) * (1 + ca) + sa
    x = x + ga * _A_ref(h, A_mem0, A_Wq, A_Wk, A_Wv, A_Wo, A_seg_len)
    h = _layernorm(x, axis=-1) * (1 + cb) + sb
    x = x + gb * _B_ref(h, B_w1, B_w3, B_w2)
    return x
```

```python
class K:
    def __init__(self, name):
        self.name = name
        self.lines = []
        self.lab = 0
    def e(self, s):
        self.lines.append("    " + s)
    def c(self, s):
        self.lines.append("    ; " + s)
    def label(self, l):
        self.lines.append(l + ":")
    def newlabel(self, base="L"):
        self.lab += 1
        return f"{self.name}_{base}{self.lab}"
    def nop(self, n):
        while n > 0:
            k = min(n, 16)
            self.e(f"s_nop {k-1}")
            n -= k
    def text(self):
        return "\n".join(self.lines)

def vr(a, n=1):
    return f"v{a}" if n == 1 else f"v[{a}:{a+n-1}]"
def ar(a, n=1):
    return f"a{a}" if n == 1 else f"a[{a}:{a+n-1}]"
def sr(a, n=1):
    return f"s{a}" if n == 1 else f"s[{a}:{a+n-1}]"
def reg(a, n=1):
    if a < 256:
        assert a + n <= 256
        return vr(a, n)
    return ar(a - 256, n)

def kernel_text(k, vgpr, sgpr=100, accum=None):
    if accum is None:
        accum = min(256, (vgpr + 3) // 4 * 4)
    t = f""".text
.globl {k.name}
.p2align 8
.type {k.name},@function
{k.name}:
{k.text()}
.section .rodata,"a"
.p2align 6
.amdhsa_kernel {k.name}
  .amdhsa_next_free_vgpr {vgpr}
  .amdhsa_next_free_sgpr {sgpr}
  .amdhsa_accum_offset {accum}
  .amdhsa_group_segment_fixed_size 0
  .amdhsa_kernarg_size 128
  .amdhsa_user_sgpr_count 2
  .amdhsa_user_sgpr_kernarg_segment_ptr 1
  .amdhsa_system_sgpr_workgroup_id_x 1
.end_amdhsa_kernel
"""
    return t
```

```python
from asmlib import *
from gen import *
import struct
def fbits(f): return struct.unpack('<I', struct.pack('<f', f))[0]

class WSG:
    def __init__(self, name, KS, RT, tiles, nstage, lds_stage_bytes):
        self.k = K(name); self.KS = KS; self.RT = RT; self.tiles = tiles; self.nstage = nstage
        self.NT = len(tiles)
        nfr = self.NT * KS
        self.wreg = {}
        nag = min(nfr, 64)
        rem = nfr - nag
        self.vtop = 256 - 4*rem
        idx = 0
        for t in range(self.NT):
            for kt in range(KS):
                if idx < nag: self.wreg[(t, kt)] = 256 + 4*idx
                else: self.wreg[(t, kt)] = self.vtop + 4*(idx - nag)
                idx += 1
        self.stage_bytes = lds_stage_bytes

    def load_weights(self, blocks, raw0=32):
        k = self.k
        for (srdreg, voff, rowstride, cpl, tids, sbase) in blocks:
            nd = cpl // 2
            CH = 4
            for kt0 in range(0, self.KS, CH):
                kts = list(range(kt0, min(self.KS, kt0 + CH)))
                for j, kt in enumerate(kts):
                    for p in range(8):
                        r = raw0 + (j*8 + p)*nd
                        k.e(f"s_add_u32 s71, s{sbase}, {(kt*32 + p)*rowstride}")
                        if nd == 1: k.e(f"buffer_load_dword v{r}, v{voff}, s[{srdreg}:{srdreg+3}], s71 offen")
                        else: k.e(f"buffer_load_dwordx2 v[{r}:{r+1}], v{voff}, s[{srdreg}:{srdreg+3}], s71 offen")
                k.e("s_waitcnt vmcnt(0)")
                for j, kt in enumerate(kts):
                    for i in range(cpl):
                        t = tids[i]
                        if t is None: continue
                        dst = self.wreg[(t, kt)]
                        for d in range(4):
                            r0 = raw0 + (j*8 + 2*d)*nd + i//2
                            r1 = raw0 + (j*8 + 2*d + 1)*nd + i//2
                            sel = "s72" if i % 2 == 0 else "s73"
                            if dst < 256:
                                k.e(f"v_perm_b32 v{dst+d}, v{r1}, v{r0}, {sel}")
                            else:
                                k.e(f"v_perm_b32 v{28+d}, v{r1}, v{r0}, {sel}")
                        if dst >= 256:
                            for d in range(4):
                                k.e(f"v_accvgpr_write_b32 a{dst-256+d}, v{28+d}")

    def dma_stage(self, buf_sgpr_lds, src_sgpr):
        k = self.k
        nfr = self.RT * self.KS
        per = nfr // 4
        assert per * 4 == nfr
        for j in range(per):
            k.e(f"s_add_u32 m0, s{buf_sgpr_lds}, {j*1024}")
            k.e(f"s_add_u32 s71, s{src_sgpr}, {j*1024}")
            k.e(f"buffer_load_dwordx4 v20, s[60:63], s71 offen lds")
        return per

    def compute(self, ldsv, acc0, afr0):
        k = self.k
        seq = [(kt, rt) for kt in range(self.KS) for rt in range(self.RT)]
        RING = 4; AHEAD = 3
        def rd(j):
            kt, rt = seq[j]
            off = (rt*self.KS + kt)*1024
            b = afr0 + (j % RING)*4
            assert off < 65536
            k.e(f"ds_read_b128 v[{b}:{b+3}], v{ldsv} offset:{off}")
        for j in range(min(AHEAD, len(seq))): rd(j)
        for j, (kt, rt) in enumerate(seq):
            if j + AHEAD < len(seq): rd(j + AHEAD)
            outstanding = min(len(seq) - 1, j + AHEAD) - j
            k.e(f"s_waitcnt lgkmcnt({outstanding})")
            b = afr0 + (j % RING)*4
            for t in range(self.NT):
                a = acc0 + (rt*self.NT + t)*4
                w = self.wreg[(t, kt)]
                c = "0" if kt == 0 else f"v[{a}:{a+3}]"
                k.e(f"v_mfma_f32_16x16x32_bf16 v[{a}:{a+3}], v[{b}:{b+3}], {reg(w,4)}, {c}")
        k.nop(8)

    def common_prologue(self, nwg):
        k = self.k
        self.done = k.newlabel("done")
        k.e(f"s_cmp_ge_u32 s2, {nwg}")
        k.e(f"s_cbranch_scc1 {self.done}")
        k.e(f"s_load_dwordx2 s[8:9], s[0:1], {KA_WS}")
        k.e("v_lshrrev_b32 v1, 6, v0")
        k.e("v_and_b32 v2, 63, v0")
        k.e("v_and_b32 v3, 15, v0")
        k.e("v_bfe_u32 v4, v0, 4, 2")
        k.e("v_readfirstlane_b32 s74, v1")
        k.e("v_lshlrev_b32 v20, 4, v2")
        k.e("s_mov_b32 s72, 0x05040100")
        k.e("s_mov_b32 s73, 0x07060302")

    def main_loop(self, src0_sgpr, stage_src_bytes, epilogue, nstores):
        k = self.k
        nfr = self.RT * self.KS
        per = nfr // 4
        sb = self.stage_bytes
        k.e(f"s_mul_i32 s79, s74, {per*1024}")
        k.e(f"s_add_u32 s76, s{src0_sgpr}, s79")
        k.e("s_mov_b32 s77, s79")
        k.e(f"s_add_u32 s78, s79, {sb}")
        self.dma_stage(77, 76)
        k.e(f"s_add_u32 s76, s76, {stage_src_bytes}")
        k.e("s_mov_b32 s75, 0")
        k.e("s_waitcnt vmcnt(0)")
        loop = k.newlabel("loop");
        k.label(loop)
        for half in range(2):
            skip = k.newlabel("skip")
            k.e(f"s_waitcnt vmcnt({nstores})")
            k.e("s_barrier")
            k.e(f"s_cmp_ge_u32 s75, {self.nstage - 1}")
            k.e(f"s_cbranch_scc1 {skip}")
            self.dma_stage(78 if half == 0 else 77, 76)
            k.e(f"s_add_u32 s76, s76, {stage_src_bytes}")
            k.label(skip)
            self.compute(21 if half == 0 else 22, self.acc0, self.afr0)
            epilogue()
            k.e("s_add_u32 s75, s75, 1")
            if half == 0:
                pass
        k.e(f"s_cmp_lt_u32 s75, {self.nstage}")
        k.e(f"s_cbranch_scc1 {loop}")

def k_qkv(TS=2):
    g = WSG("qkv_kernel", 20, 2, [0,1,2,3], 64 // TS, 40960)
    k = g.k
    g.common_prologue(72*TS)
    k.e(f"s_load_dwordx2 s[10:11], s[0:1], {KA_WQ}")
    k.e(f"s_load_dwordx2 s[12:13], s[0:1], {KA_WK}")
    k.e(f"s_load_dwordx2 s[14:15], s[0:1], {KA_WV}")
    k.e("s_mov_b32 s16, s2")
    k.e("s_mov_b32 s17, 0")
    for i in range(1, TS):
        k.e(f"s_cmp_ge_u32 s2, {72*i}")
        k.e(f"s_cselect_b32 s16, s2, s16")
    k.e("s_mov_b32 s17, 0")
    for i in range(1, TS):
        k.e(f"s_cmp_ge_u32 s2, {72*i}")
        k.e("s_addc_u32 s17, s17, 0")
    k.e("s_mul_i32 s16, s17, 72")
    k.e("s_sub_u32 s16, s2, s16")
    k.e("s_mov_b32 s18, 0")
    k.e("s_cmp_ge_u32 s16, 24"); k.e("s_addc_u32 s18, s18, 0")
    k.e("s_cmp_ge_u32 s16, 48"); k.e("s_addc_u32 s18, s18, 0")
    k.e("s_mul_i32 s19, s18, 24")
    k.e("s_sub_u32 s19, s16, s19")
    k.e("s_lshl_b32 s19, s19, 8")
    k.e("s_lshl_b32 s3, s74, 6")
    k.e("s_add_u32 s19, s19, s3")
    k.e("s_waitcnt lgkmcnt(0)")
    srd(k, 60, 8, WS_SIZE)
    k.e("s_cmp_eq_u32 s18, 1")
    k.e("s_cselect_b32 s10, s12, s10"); k.e("s_cselect_b32 s11, s13, s11")
    k.e("s_cmp_eq_u32 s18, 2")
    k.e("s_cselect_b32 s10, s14, s10"); k.e("s_cselect_b32 s11, s15, s11")
    srd(k, 64, 10, D*H*E*2)
    k.e("s_mov_b32 s3, 98304")
    k.e("v_mul_lo_u32 v5, v4, s3")
    k.e("v_lshl_add_u32 v5, v3, 3, v5")
    k.e("s_lshl_b32 s70, s19, 1")
    g.load_weights([(64, 5, 12288, 4, [0,1,2,3], 70)])
    g.acc0 = 32; g.afr0 = 64
    k.e("v_mov_b32 v21, v20")
    k.e("v_add_u32 v22, 40960, v20")
    k.e(f"s_mul_i32 s20, s17, {(64//TS)*40960}")
    k.e(f"s_add_u32 s20, s20, {WS_H1F}")
    k.e(f"s_mul_i32 s21, s17, {(T//TS)}")
    k.e("s_mov_b32 s3, 49152")
    k.e("v_mul_lo_u32 v23, v4, s3")
    k.e("v_lshl_add_u32 v23, v3, 3, v23")
    k.e("v_add_u32 v23, s70, v23")
    k.e("s_mul_hi_u32 s22, s19, 0x1555556")
    k.e("s_mul_i32 s23, s22, 192")
    k.e("s_sub_u32 s23, s19, s23")
    k.e("v_lshrrev_b32 v24, 3, v3")
    k.e("s_lshr_b32 s3, s23, 5")
    k.e("v_add_u32 v24, s3, v24")
    k.e("v_lshlrev_b32 v24, 10, v24")
    k.e("v_bfe_u32 v25, v3, 1, 2")
    k.e("v_lshl_add_u32 v24, v25, 8, v24")
    k.e("v_lshl_add_u32 v24, v4, 6, v24")
    k.e("v_and_b32 v25, 1, v3")
    k.e("v_lshl_add_u32 v24, v25, 3, v24")
    k.e(f"s_mul_i32 s24, s22, {128*6144}")
    k.e(f"s_add_u32 s24, s24, {WS_VF}")
    k.e(f"s_mov_b32 s25, {WS_Q}")
    k.e("s_cmp_eq_u32 s18, 1")
    k.e(f"s_cselect_b32 s25, {WS_K}, s25")
    def epi():
        isv = k.newlabel("isv"); end = k.newlabel("epiend")
        for rt in range(2):
            for r in range(4):
                a = g.acc0 + rt*16
                d = 80 + (rt*4 + r)*2
                k.e(f"v_cvt_pk_bf16_f32 v{d}, v{a+r}, v{a+4+r}")
                k.e(f"v_cvt_pk_bf16_f32 v{d+1}, v{a+8+r}, v{a+12+r}")
        k.e("s_cmp_eq_u32 s18, 2")
        k.e(f"s_cbranch_scc1 {isv}")
        k.e("s_lshl_b32 s3, s75, 5")
        k.e("s_add_u32 s3, s3, s21")
        k.e("s_mul_i32 s3, s3, 12288")
        k.e("s_add_u32 s3, s3, s25")
        for rt in range(2):
            for r in range(4):
                d = 80 + (rt*4 + r)*2
                k.e(f"s_add_u32 s71, s3, {(rt*16 + r)*12288}")
                k.e(f"buffer_store_dwordx2 v[{d}:{d+1}], v23, s[60:63], s71 offen")
        k.e(f"s_branch {end}")
        k.label(isv)
        k.e("s_lshr_b32 s3, s21, 4")
        k.e("s_lshl_b32 s71, s75, 1")
        k.e("s_add_u32 s3, s3, s71")
        k.e("s_mul_i32 s3, s3, 6144")
        k.e("s_add_u32 s3, s3, s24")
        for rt in range(2):
            for r in range(4):
                d = 80 + (rt*4 + r)*2
                k.e(f"s_add_u32 s71, s3, {rt*6144}")
                k.e(f"buffer_store_dwordx2 v[{d}:{d+1}], v24, s[60:63], s71 offen offset:{r*16}")
        k.label(end)
    g.main_loop(20, 40960, epi, 8)
    k.label(g.done)
    k.e("s_endpgm")
    return kernel_text(k, 512, 100, 256), f"; @launch kernel=qkv_kernel grid=({72*TS},1,1) block=(256,1,1) lds=81920"

def k_vo(TS=4):
    g = WSG("vo_kernel", 6, 2, list(range(10)), 64 // TS, 12288)
    k = g.k
    g.common_prologue(32*TS)
    k.e(f"s_load_dwordx2 s[10:11], s[0:1], {KA_WO}")
    k.e("s_and_b32 s16, s2, 31")
    k.e("s_lshr_b32 s17, s2, 5")
    k.e("s_waitcnt lgkmcnt(0)")
    srd(k, 60, 8, WS_SIZE)
    srd(k, 64, 10, H*E*D*2)
    k.e("s_movk_i32 s3, 10240")
    k.e("v_mul_lo_u32 v5, v4, s3")
    k.e("v_lshl_add_u32 v6, v3, 2, v5")
    k.e("v_lshl_add_u32 v5, v3, 3, v5")
    k.e("s_mul_i32 s19, s74, 160")
    k.e("s_mul_i32 s3, s16, 245760")
    k.e("s_lshl_b32 s26, s19, 1")
    k.e("s_add_u32 s26, s26, s3")
    k.e("s_add_u32 s27, s26, 128")
    k.e("s_add_u32 s28, s26, 256")
    g.load_weights([(64, 5, 1280, 4, [0,1,2,3], 26), (64, 5, 1280, 4, [4,5,6,7], 27), (64, 6, 1280, 2, [8,9], 28)])
    g.acc0 = 32; g.afr0 = 112
    k.e("v_mov_b32 v21, v20")
    k.e("v_add_u32 v22, 12288, v20")
    k.e(f"s_mul_i32 s20, s16, 128")
    k.e(f"s_mul_i32 s3, s17, {128//TS}")
    k.e("s_add_u32 s20, s20, s3")
    k.e("s_mul_i32 s20, s20, 6144")
    k.e(f"s_add_u32 s20, s20, {WS_VF}")
    k.e("v_lshlrev_b32 v23, 8, v3")
    k.e("v_lshl_add_u32 v23, v4, 4, v23")
    k.e("v_lshlrev_b32 v24, 7, v3")
    k.e("v_lshl_add_u32 v24, v4, 4, v24")
    k.e(f"s_mul_i32 s21, s17, {64//TS}")
    def epi():
        k.e("s_add_u32 s3, s21, s75")
        k.e("s_lshl_b32 s3, s3, 5")
        k.e("s_add_u32 s3, s3, s16")
        k.e("s_mul_i32 s3, s3, 640")
        k.e("s_add_u32 s3, s3, s19")
        k.e("s_lshl_b32 s3, s3, 6")
        k.e(f"s_add_u32 s3, s3, {WS_VOX}")
        for t in range(10):
            a0 = g.acc0 + t*4; a1 = g.acc0 + (10 + t)*4
            d = 128 + (t % 4)*4
            k.e(f"v_cvt_pk_bf16_f32 v{d}, v{a0}, v{a0+1}")
            k.e(f"v_cvt_pk_bf16_f32 v{d+1}, v{a0+2}, v{a0+3}")
            k.e(f"v_cvt_pk_bf16_f32 v{d+2}, v{a1}, v{a1+1}")
            k.e(f"v_cvt_pk_bf16_f32 v{d+3}, v{a1+2}, v{a1+3}")
            if t < 8:
                off = (t//4)*64*64 + (t%4)*64; vo = 23
            else:
                off = 128*64 + (t-8)*64; vo = 24
            k.e(f"s_add_u32 s71, s3, {off}")
            k.e(f"buffer_store_dwordx4 v[{d}:{d+3}], v{vo}, s[60:63], s71 offen")
        k.e("s_nop 1")
    g.main_loop(20, 12288, epi, 10)
    k.label(g.done)
    k.e("s_endpgm")
    return kernel_text(k, 512, 100, 256), f"; @launch kernel=vo_kernel grid=({32*TS},1,1) block=(256,1,1) lds=24576"

def all_kernels():
    ks = [k_mod(), k_ln("ln1_kernel", True), k_qkv(), k_vo()]
    try:
        import kernels3
        ks += kernels3.more_kernels()
    except ImportError:
        pass
    return ks
```

```python
from asmlib import *
from gen import *
import struct
def fbits(f): return struct.unpack('<I', struct.pack('<f', f))[0]

SPIN_LIMIT = 1 << 16
NREG_FR = 87
NLDS_FR = 33
LDS_MEMS = 4*NLDS_FR*1024
LDS_EX = LDS_MEMS + 8*1296
LDS_TOTAL = LDS_EX + 16*400

def wloc(f):
    if f < 64: return ('r', 256 + 4*f)
    if f < NREG_FR: return ('r', 164 + 4*(f - 64))
    return ('l', f - NREG_FR)

def xred(k, v, tmp, op):
    k.e(f"v_mov_b32 v{tmp}, v{v}")
    k.e("s_nop 1")
    k.e(f"v_permlane16_swap_b32 v{v}, v{tmp}")
    k.e("s_nop 1")
    k.e(f"{op} v{v}, v{v}, v{tmp}")
    k.e(f"v_mov_b32 v{tmp}, v{v}")
    k.e("s_nop 1")
    k.e(f"v_permlane32_swap_b32 v{v}, v{tmp}")
    k.e("s_nop 1")
    k.e(f"{op} v{v}, v{v}, v{tmp}")

def put_frag(k, f, src4):
    kind, r = wloc(f)
    if kind == 'l':
        k.e(f"ds_write_b128 v19, v[{src4}:{src4+3}] offset:{r*1024}")
    elif r >= 256:
        for d in range(4): k.e(f"v_accvgpr_write_b32 a{r-256+d}, v{src4+d}")
    else:
        for d in range(4): k.e(f"v_mov_b32 v{r+d}, v{src4+d}")

def load_block(k, srdreg, voff, rowstride, cpl, sbase, KS, dests, raw0=32):
    nd = cpl // 2
    CH = 4
    for kt0 in range(0, KS, CH):
        kts = list(range(kt0, min(KS, kt0 + CH)))
        for j, kt in enumerate(kts):
            for p in range(8):
                r = raw0 + (j*8 + p)*nd
                k.e(f"s_add_u32 s71, s{sbase}, {(kt*32 + p)*rowstride}")
                if nd == 1: k.e(f"buffer_load_dword v{r}, v{voff}, s[{srdreg}:{srdreg+3}], s71 offen")
                else: k.e(f"buffer_load_dwordx2 v[{r}:{r+1}], v{voff}, s[{srdreg}:{srdreg+3}], s71 offen")
        k.e("s_waitcnt vmcnt(0)")
        for j, kt in enumerate(kts):
            for i in range(cpl):
                if dests[i] is None: continue
                t4 = 100 + 4*((j*cpl + i) % 4)
                for d in range(4):
                    r0 = raw0 + (j*8 + 2*d)*nd + i//2
                    r1 = raw0 + (j*8 + 2*d + 1)*nd + i//2
                    sel = "s72" if i % 2 == 0 else "s73"
                    k.e(f"v_perm_b32 v{t4+d}, v{r1}, v{r0}, {sel}")
                put_frag(k, dests[i](kt), t4)
        k.e("s_waitcnt lgkmcnt(0)")

def poll_mem(k, tag):
    loop = k.newlabel("pm"); ok = k.newlabel("pmok")
    k.e("s_mov_b32 s31, 0")
    k.label(loop)
    for j in range(3):
        k.e(f"buffer_load_dwordx4 v[{136+4*j}:{139+4*j}], v{10+j}, s[60:63], s30 offen sc1")
    k.e("s_waitcnt vmcnt(0)")
    k.e("v_max3_u32 v148, v136, v137, v138")
    k.e("v_max3_u32 v149, v139, v140, v141")
    k.e("v_max3_u32 v150, v142, v143, v144")
    k.e("v_max3_u32 v151, v145, v146, v147")
    k.e("v_max3_u32 v148, v148, v149, v150")
    k.e("v_max_u32 v148, v148, v151")
    k.e("v_cmp_eq_u32 vcc, -1, v148")
    k.e(f"s_cbranch_vccz {ok}")
    k.e("s_add_u32 s31, s31, 1")
    k.e(f"s_cmp_lt_u32 s31, {SPIN_LIMIT}")
    k.e(f"s_cbranch_scc1 {loop}")
    k.label(ok)
    for j in range(3):
        k.e(f"ds_write_b128 v{13+j}, v[{136+4*j}:{139+4*j}]")
    k.e("s_waitcnt lgkmcnt(0)")
    k.e("s_barrier")

def proj(k, nt, fr, acc0, KS=20):
    MR, WR = 56, 72
    reads = []
    for kt in range(KS):
        reads.append(('m', kt, None))
        for t in range(nt):
            if wloc(fr(kt, t))[0] == 'l': reads.append(('w', kt, t))
    mslot = {}; wslot = {}
    mi = wi = 0
    for rd in reads:
        if rd[0] == 'm': mslot[rd[1]] = MR + 4*(mi % 4); mi += 1
        else: wslot[(rd[1], rd[2])] = WR + 4*(wi % 4); wi += 1
    issued = 0
    def issue(n):
        nonlocal issued
        while issued < min(n, len(reads)):
            kind, kt, t = reads[issued]
            if kind == 'm':
                b = mslot[kt]; k.e(f"ds_read_b128 v[{b}:{b+3}], v16 offset:{kt*64}")
            else:
                b = wslot[(kt, t)]; k.e(f"ds_read_b128 v[{b}:{b+3}], v18 offset:{wloc(fr(kt,t))[1]*1024}")
            issued += 1
    pos = 0
    AHEAD = 3
    issue(AHEAD)
    for kt in range(KS):
        assert reads[pos] == ('m', kt, None)
        issue(pos + 1 + AHEAD - 1)
        k.e(f"s_waitcnt lgkmcnt({issued - pos - 1})")
        pos += 1
        for t in range(nt):
            kind, r = wloc(fr(kt, t))
            if kind == 'l':
                assert reads[pos] == ('w', kt, t)
                issue(pos + AHEAD)
                k.e(f"s_waitcnt lgkmcnt({issued - pos - 1})")
                pos += 1
                wop = f"v[{wslot[(kt,t)]}:{wslot[(kt,t)]+3}]"
            else:
                wop = reg(r, 4)
            a = acc0 + 4*t
            c = "0" if kt == 0 else f"v[{a}:{a+3}]"
            mb = mslot[kt]
            k.e(f"v_mfma_f32_16x16x32_bf16 v[{a}:{a+3}], {wop}, v[{mb}:{mb+3}], {c}")
    k.nop(8)

def k_rec():
    k = K("rec_kernel")
    done = k.newlabel("done"); LB = k.newlabel("roleB"); LY = k.newlabel("roleY")
    k.e("s_cmp_ge_u32 s2, 104")
    k.e(f"s_cbranch_scc1 {done}")
    k.e(f"s_load_dwordx2 s[8:9], s[0:1], {KA_WS}")
    k.e(f"s_load_dwordx4 s[12:15], s[0:1], {KA_WQ}")
    k.e(f"s_load_dwordx4 s[16:19], s[0:1], {KA_WV}")
    k.e("v_lshrrev_b32 v1, 6, v0")
    k.e("v_and_b32 v2, 63, v0")
    k.e("v_and_b32 v3, 15, v0")
    k.e("v_bfe_u32 v4, v0, 4, 2")
    k.e("v_and_b32 v5, 7, v0")
    k.e("v_readfirstlane_b32 s74, v1")
    k.e("s_mov_b32 s72, 0x05040100")
    k.e("s_mov_b32 s73, 0x07060302")
    k.e("v_cmp_gt_u32 s[80:81], 8, v3")
    k.e("v_cmp_gt_u32 s[82:83], 32, v2")
    k.e("s_nop 1")
    k.e("s_and_b64 s[82:83], s[82:83], s[80:81]")
    k.e("v_cmp_le_u32 s[84:85], 32, v2")
    k.e("s_waitcnt lgkmcnt(0)")
    srd(k, 60, 8, WS_SIZE)
    k.e("s_cmp_ge_u32 s2, 64")
    k.e(f"s_cbranch_scc1 {LY}")
    k.e("s_and_b32 s20, s2, 31")
    for j in range(3):
        k.e(f"v_add_u32 v6, {j*64}, v2")
        k.e("v_min_u32 v6, 159, v6")
        k.e(f"v_lshlrev_b32 v{10+j}, 4, v6")
        k.e("v_bfe_u32 v7, v6, 1, 3")
        k.e("s_movk_i32 s3, 1296")
        k.e("v_mul_lo_u32 v7, v7, s3")
        k.e("v_lshrrev_b32 v8, 4, v6")
        k.e("s_mul_i32 s3, s74, 10")
        k.e("v_add_u32 v8, s3, v8")
        k.e("v_lshl_add_u32 v7, v8, 5, v7")
        k.e("v_and_b32 v8, 1, v6")
        k.e("v_lshl_add_u32 v7, v8, 4, v7")
        k.e(f"v_add_u32 v{13+j}, {LDS_MEMS}, v7")
    k.e("s_movk_i32 s3, 1296")
    k.e("v_mul_lo_u32 v16, v5, s3")
    k.e("v_lshl_add_u32 v16, v4, 4, v16")
    k.e(f"v_add_u32 v16, {LDS_MEMS}, v16")
    k.e(f"s_mul_i32 s3, s74, {NLDS_FR*1024}")
    k.e("v_lshlrev_b32 v18, 4, v2")
    k.e("v_add_u32 v18, s3, v18")
    k.e("v_mov_b32 v19, v18")
    k.e("s_movk_i32 s3, 400")
    k.e("v_mul_lo_u32 v17, v5, s3")
    k.e(f"v_add_u32 v17, {LDS_EX}, v17")
    k.e(f"s_mul_i32 s30, s74, 2560")
    k.e(f"s_add_u32 s30, s30, {WS_MEM}")
    k.e("s_mov_b32 s29, 0")
    k.e("s_cmp_ge_u32 s2, 32")
    k.e(f"s_cbranch_scc1 {LB}")

    k.e("s_cmp_ge_u32 s74, 2")
    k.e("s_cselect_b32 s12, s14, s12"); k.e("s_cselect_b32 s13, s15, s13")
    srd(k, 64, 12, D*H*E*2)
    k.e("s_and_b32 s3, s74, 1")
    k.e("s_mul_i32 s3, s3, 192")
    k.e("s_mul_i32 s21, s20, 384")
    k.e("s_add_u32 s21, s21, s3")
    k.e("s_mov_b32 s3, 98304")
    k.e("v_mul_lo_u32 v6, v4, s3")
    k.e("v_lshl_add_u32 v6, v3, 2, v6")
    for b in range(3):
        k.e(f"s_add_u32 s22, s21, {b*64}")
        load_block(k, 64, 6, 12288, 2, 22, 20, [lambda kt, b=b: kt*6 + 2*b, lambda kt, b=b: kt*6 + 2*b + 1])
    k.e("s_lshr_b32 s3, s74, 1")
    k.e("s_mul_i32 s3, s3, 3200")
    k.e("s_and_b32 s22, s74, 1")
    k.e("s_mul_i32 s22, s22, 192")
    k.e("s_add_u32 s3, s3, s22")
    k.e("v_lshl_add_u32 v20, v4, 4, v17")
    k.e("v_add_u32 v20, s3, v20")
    k.e("v_lshl_add_u32 v21, v4, 4, v17")
    k.e("s_movk_i32 s3, 12288")
    k.e("v_mul_lo_u32 v22, v3, s3")
    k.e("v_lshl_add_u32 v22, v4, 4, v22")
    k.e("s_mul_i32 s23, s20, 384")
    k.e(f"s_add_u32 s23, s23, {WS_K}")
    k.e("v_mul_u32_u24 v23, 80, v3")
    k.e("v_lshl_add_u32 v24, v4, 4, v23")
    k.e("v_add_u32 v24, 16, v24")
    k.e("v_lshl_add_u32 v23, v4, 3, v23")
    k.e("s_mul_i32 s24, s20, 640")
    k.e(f"s_add_u32 s24, s24, {WS_PB}")
    k.e("v_mul_u32_u24 v25, 384, v3")
    k.e("v_lshl_add_u32 v25, v4, 4, v25")
    k.e("s_mul_i32 s25, s20, 3072")
    k.e(f"s_add_u32 s25, s25, {WS_KM}")
    k.e("v_mov_b32 v26, 0xff800000")
    k.e("s_barrier")
    la = k.newlabel("Aloop"); lfin = k.newlabel("Afin"); lnext = k.newlabel("Anext")
    k.label(la)
    k.e("s_cmp_lg_u32 s74, 0")
    nokx = k.newlabel("nokx")
    k.e(f"s_cbranch_scc1 {nokx}")
    for u in range(2):
        k.e(f"s_add_u32 s71, s23, {u*16*12288}")
        for t in range(6):
            b = 88 + (u*6 + t)*4
            k.e(f"buffer_load_dwordx4 v[{b}:{b+3}], v22, s[60:63], s71 offen offset:{t*64}")
    k.label(nokx)
    poll_mem(k, "A")
    proj(k, 6, lambda kt, t: kt*6 + t, 32)
    for b in range(3):
        a0 = 32 + 8*b; a1 = a0 + 4
        for r in range(4):
            k.e(f"v_cvt_pk_bf16_f32 v{148+4*b+r}, v{a0+r}, v{a1+r}")
        k.e(f"ds_write_b128 v20, v[{148+4*b}:{151+4*b}] offset:{b*64}")
    k.e("s_waitcnt lgkmcnt(0)")
    k.e("s_barrier")
    k.e("s_cmp_lg_u32 s74, 0")
    k.e(f"s_cbranch_scc1 {lnext}")
    for t in range(6):
        k.e(f"ds_read_b128 v[{32+4*t}:{35+4*t}], v21 offset:{t*64}")
        k.e(f"ds_read_b128 v[{56+4*t}:{59+4*t}], v21 offset:{3200 + t*64}")
    for t in range(6):
        k.e(f"s_waitcnt lgkmcnt({10 - 2*t})")
        for T_ in range(3):
            a = 136 + 4*T_
            kop = f"v[{56+4*t}:{59+4*t}]" if T_ == 0 else f"v[{88+((T_-1)*6+t)*4}:{91+((T_-1)*6+t)*4}]"
            c = "0" if t == 0 else f"v[{a}:{a+3}]"
            k.e(f"v_mfma_f32_16x16x32_bf16 v[{a}:{a+3}], {kop}, v[{32+4*t}:{35+4*t}], {c}")
    k.nop(8)
    sc = fbits(192 ** -0.5)
    for i in range(0, 12, 2):
        a = 136 + i
        k.e(f"v_cvt_pk_bf16_f32 v148, v{a}, v{a+1}")
        k.e(f"v_lshlrev_b32 v{a}, 16, v148")
        k.e(f"v_and_b32 v{a+1}, 0xffff0000, v148")
        k.e(f"v_mul_f32 v{a}, 0x{sc:08x}, v{a}")
        k.e(f"v_mul_f32 v{a+1}, 0x{sc:08x}, v{a+1}")
        k.e(f"v_cvt_pk_bf16_f32 v148, v{a}, v{a+1}")
        k.e(f"v_lshlrev_b32 v{a}, 16, v148")
        k.e(f"v_and_b32 v{a+1}, 0xffff0000, v148")
    for r in range(4):
        k.e(f"v_cndmask_b32 v{136+r}, v{136+r}, v26, s[84:85]")
    k.e("v_max3_f32 v148, v136, v137, v138")
    k.e("v_max3_f32 v149, v139, v140, v141")
    k.e("v_max3_f32 v150, v142, v143, v144")
    k.e("v_max3_f32 v151, v145, v146, v147")
    k.e("v_max3_f32 v148, v148, v149, v150")
    k.e("v_max_f32 v148, v148, v151")
    xred(k, 148, 149, "v_max_f32")
    k.e("v_mul_f32 v148, 0xbfb8aa3b, v148")
    k.e("s_mov_b32 s3, 0x3fb8aa3b")
    for i in range(12):
        k.e(f"v_fma_f32 v{136+i}, v{136+i}, s3, v148")
    for i in range(12):
        k.e(f"v_exp_f32 v{136+i}, v{136+i}")
    k.e("s_nop 0")
    k.e("v_add_f32 v149, v136, v137")
    for i in range(2, 12):
        k.e(f"v_add_f32 v149, v149, v{136+i}")
    xred(k, 149, 150, "v_add_f32")
    k.e("v_rcp_f32 v149, v149")
    k.e("s_nop 0")
    for i in range(12):
        k.e(f"v_mul_f32 v{136+i}, v{136+i}, v149")
    for i in range(6):
        k.e(f"v_cvt_pk_bf16_f32 v{152+i}, v{136+2*i}, v{137+2*i}")
    for i in range(6):
        k.e(f"v_min_u32 v{152+i}, 0xfffffffe, v{152+i}")
    k.e("s_mov_b64 exec, s[80:81]")
    k.e("buffer_store_dwordx4 v[154:157], v24, s[60:63], s24 offen sc1")
    k.e("s_mov_b64 exec, s[82:83]")
    k.e("buffer_store_dwordx2 v[152:153], v23, s[60:63], s24 offen sc1")
    k.e("s_mov_b64 exec, s[80:81]")
    for t in range(6):
        k.e(f"buffer_store_dwordx4 v[{56+4*t}:{59+4*t}], v25, s[60:63], s25 offen offset:{t*64}")
    k.e("s_mov_b64 exec, -1")
    k.label(lnext)
    k.e("s_add_u32 s29, s29, 1")
    k.e("s_add_u32 s30, s30, 10240")
    k.e(f"s_add_u32 s23, s23, {32*12288}")
    k.e(f"s_add_u32 s24, s24, {32*640}")
    k.e(f"s_add_u32 s25, s25, {32*3072}")
    k.e(f"s_cmp_lt_u32 s29, {NS}")
    k.e(f"s_cbranch_scc1 {la}")
    k.e(f"s_branch {done}")

    k.label(LB)
    srd(k, 64, 16, D*H*E*2)
    srd(k, 88, 18, H*E*D*2)
    k.e("s_mov_b32 s3, 98304")
    k.e("v_mul_lo_u32 v6, v4, s3")
    k.e("v_lshl_add_u32 v6, v3, 2, v6")
    k.e("s_mul_i32 s26, s74, 3")
    k.e("s_lshr_b32 s26, s26, 1")
    k.e("s_mul_i32 s21, s20, 384")
    k.e("s_lshl_b32 s3, s26, 6")
    k.e("s_add_u32 s21, s21, s3")
    k.e("s_add_u32 s22, s21, 64")
    odd = k.newlabel("odd"); wl2 = k.newlabel("wl2")
    fv = lambda j: (lambda kt: kt*3 + j)
    k.e("s_bitcmp1_b32 s74, 0")
    k.e(f"s_cbranch_scc1 {odd}")
    load_block(k, 64, 6, 12288, 2, 21, 20, [fv(0), fv(1)])
    load_block(k, 64, 6, 12288, 2, 22, 20, [fv(2), None])
    k.e("s_lshl_b32 s40, s26, 6"); k.e("s_add_u32 s41, s40, 2"); k.e("s_add_u32 s42, s40, 64")
    k.e(f"s_branch {wl2}")
    k.label(odd)
    load_block(k, 64, 6, 12288, 2, 21, 20, [None, fv(0)])
    load_block(k, 64, 6, 12288, 2, 22, 20, [fv(1), fv(2)])
    k.e("s_lshl_b32 s40, s26, 6"); k.e("s_add_u32 s40, s40, 2"); k.e("s_add_u32 s41, s40, 62"); k.e("s_add_u32 s42, s40, 64")
    k.label(wl2)
    fo = lambda t: (lambda kt: 60 + kt*10 + t)
    k.e("s_movk_i32 s3, 10240")
    k.e("v_mul_lo_u32 v6, v4, s3")
    k.e("v_lshl_add_u32 v7, v3, 2, v6")
    k.e("v_lshl_add_u32 v6, v3, 3, v6")
    k.e("s_mul_i32 s27, s74, 160")
    k.e("s_mul_i32 s3, s20, 245760")
    k.e("s_lshl_b32 s21, s27, 1")
    k.e("s_add_u32 s21, s21, s3")
    k.e("s_add_u32 s22, s21, 128")
    k.e("s_add_u32 s23, s21, 256")
    load_block(k, 88, 6, 1280, 4, 21, 6, [fo(0), fo(1), fo(2), fo(3)])
    load_block(k, 88, 6, 1280, 4, 22, 6, [fo(4), fo(5), fo(6), fo(7)])
    load_block(k, 88, 7, 1280, 2, 23, 6, [fo(8), fo(9)])
    k.e("v_lshl_add_u32 v21, v4, 4, v17")
    for j in range(3):
        k.e(f"v_add_u32 v{22+j}, s{40+j}, v21")
    k.e("v_lshlrev_b32 v25, 6, v3")
    k.e("v_lshl_add_u32 v25, v4, 3, v25")
    k.e("v_lshlrev_b32 v26, 5, v3")
    k.e("v_lshl_add_u32 v26, v4, 3, v26")
    k.e("s_mul_i32 s24, s20, 640")
    k.e("s_add_u32 s24, s24, s27")
    k.e("s_lshl_b32 s24, s24, 4")
    k.e(f"s_add_u32 s24, s24, {WS_VOM}")
    k.e("s_barrier")
    lb = k.newlabel("Bloop")
    k.label(lb)
    poll_mem(k, "B")
    proj(k, 3, lambda kt, t: kt*3 + t, 32)
    for j in range(3):
        for r in range(4):
            k.e(f"v_cvt_pk_bf16_f32 v{148+r}, v{32+4*j+r}, v{32+4*j+r}")
        for r in range(4):
            k.e(f"ds_write_b16 v{22+j}, v{148+r} offset:{4*r}")
    k.e("s_waitcnt lgkmcnt(0)")
    k.e("s_barrier")
    for t in range(6):
        k.e(f"ds_read_b128 v[{88+4*t}:{91+4*t}], v21 offset:{t*64}")
    wi = 0
    pend = [(kt, t) for kt in range(6) for t in range(10) if wloc(60 + kt*10 + t)[0] == 'l']
    slot = {p: 72 + 4*(i % 4) for i, p in enumerate(pend)}
    issued = 0
    k.e("s_waitcnt lgkmcnt(0)")
    def issue(n):
        nonlocal issued
        while issued < min(n, len(pend)):
            p = pend[issued]; b = slot[p]
            k.e(f"ds_read_b128 v[{b}:{b+3}], v18 offset:{wloc(60 + p[0]*10 + p[1])[1]*1024}")
            issued += 1
    issue(3)
    pos = 0
    for kt in range(6):
        for t in range(10):
            kind, r = wloc(60 + kt*10 + t)
            if kind == 'l':
                issue(pos + 3)
                k.e(f"s_waitcnt lgkmcnt({issued - pos - 1})")
                wop = f"v[{slot[(kt,t)]}:{slot[(kt,t)]+3}]"
                pos += 1
            else:
                wop = reg(r, 4)
            a = 112 + 4*t
            c = "0" if kt == 0 else f"v[{a}:{a+3}]"
            k.e(f"v_mfma_f32_16x16x32_bf16 v[{a}:{a+3}], v[{88+4*kt}:{91+4*kt}], {wop}, {c}")
    k.nop(8)
    k.e("s_mov_b32 exec_lo, -1")
    k.e("s_mov_b32 exec_hi, 0")
    for t in range(10):
        a = 112 + 4*t
        d = 152 + 2*(t % 4)
        k.e(f"v_cvt_pk_bf16_f32 v{d}, v{a}, v{a+1}")
        k.e(f"v_cvt_pk_bf16_f32 v{d+1}, v{a+2}, v{a+3}")
        k.e(f"v_min_u32 v{d}, 0xfffffffe, v{d}")
        k.e(f"v_min_u32 v{d+1}, 0xfffffffe, v{d+1}")
        if t < 8: off = (t//4)*1024 + (t%4)*16; vo = 25
        else: off = 2048 + (t-8)*16; vo = 26
        k.e(f"buffer_store_dwordx2 v[{d}:{d+1}], v{vo}, s[60:63], s24 offen offset:{off} sc1")
    k.e("s_mov_b64 exec, -1")
    k.e("s_add_u32 s29, s29, 1")
    k.e("s_add_u32 s30, s30, 10240")
    k.e(f"s_add_u32 s24, s24, {32*640*16}")
    k.e(f"s_cmp_lt_u32 s29, {NS}")
    k.e(f"s_cbranch_scc1 {lb}")
    k.e(f"s_branch {done}")

    k.label(LY)
    k.e("s_sub_u32 s20, s2, 64")
    k.e("v_mul_u32_u24 v6, 80, v5")
    k.e("s_mul_i32 s3, s74, 5120")
    k.e("v_add_u32 v6, s3, v6")
    k.e("v_lshl_add_u32 v7, v4, 4, v6")
    k.e("v_add_u32 v7, 16, v7")
    k.e("v_mul_u32_u24 v8, 640, v4")
    k.e("v_add_u32 v6, v8, v6")
    k.e("s_lshl_b32 s21, s20, 4")
    k.e("s_add_u32 s21, s21, s3")
    k.e("v_add_u32 v9, s21, v3")
    k.e("v_add_u32 v10, v8, v9")
    k.e("v_lshlrev_b32 v10, 4, v10")
    k.e("v_lshlrev_b32 v9, 6, v9")
    k.e("v_lshl_add_u32 v9, v4, 4, v9")
    k.e(f"s_mov_b32 s22, {WS_PB}")
    k.e(f"s_mov_b32 s23, {WS_VOM}")
    k.e(f"s_mov_b32 s24, {WS_VOX}")
    k.e("v_lshlrev_b32 v11, 4, v0")
    k.e("v_lshlrev_b32 v12, 4, v2")
    k.e("v_lshlrev_b32 v13, 5, v3")
    k.e("v_lshl_add_u32 v13, v4, 3, v13")
    k.e("s_lshl_b32 s25, s20, 8")
    k.e(f"s_add_u32 s25, s25, {WS_MEM + 10240}")
    k.e("s_mov_b32 s29, 0")
    ly = k.newlabel("Yloop"); yp = k.newlabel("Ypoll"); yok = k.newlabel("Yok"); ynext = k.newlabel("Ynext")
    k.label(ly)
    for t in range(2, 10):
        k.e(f"s_add_u32 s71, s24, {(t-2)*640*64}")
        k.e(f"buffer_load_dwordx4 v[{40+4*t}:{43+4*t}], v9, s[60:63], s71 offen")
    k.e("s_mov_b32 s31, 0")
    k.label(yp)
    for t in range(2):
        k.e(f"s_add_u32 s71, s23, {t*4*640*16}")
        k.e(f"buffer_load_dwordx4 v[{40+4*t}:{43+4*t}], v10, s[60:63], s71 offen sc1")
        k.e(f"buffer_load_dwordx4 v[{80+4*t}:{83+4*t}], v6, s[60:63], s22 offen offset:{t*2560} sc1")
    for t in range(2, 10):
        k.e(f"s_add_u32 s71, s22, {(t-2)*640}")
        k.e(f"buffer_load_dwordx4 v[{80+4*t}:{83+4*t}], v7, s[60:63], s71 offen sc1")
    k.e("s_waitcnt vmcnt(0)")
    regs = list(range(40, 48)) + list(range(80, 120))
    k.e(f"v_max3_u32 v120, v{regs[0]}, v{regs[1]}, v{regs[2]}")
    i = 3
    while i < len(regs):
        if i + 1 < len(regs):
            k.e(f"v_max3_u32 v120, v120, v{regs[i]}, v{regs[i+1]}"); i += 2
        else:
            k.e(f"v_max_u32 v120, v120, v{regs[i]}"); i += 1
    k.e("v_cmp_eq_u32 vcc, -1, v120")
    k.e(f"s_cbranch_vccz {yok}")
    k.e("s_add_u32 s31, s31, 1")
    k.e(f"s_cmp_lt_u32 s31, {SPIN_LIMIT}")
    k.e(f"s_cbranch_scc1 {yp}")
    k.label(yok)
    for t in range(10):
        c = "0" if t == 0 else "v[124:127]"
        k.e(f"v_mfma_f32_16x16x32_bf16 v[124:127], v[{40+4*t}:{43+4*t}], v[{80+4*t}:{83+4*t}], {c}")
    k.nop(8)
    k.e("ds_write_b128 v11, v[124:127]")
    k.e("s_waitcnt lgkmcnt(0)")
    k.e("s_barrier")
    k.e("s_cmp_lg_u32 s74, 0")
    k.e(f"s_cbranch_scc1 {ynext}")
    for w in range(1, 4):
        k.e(f"ds_read_b128 v[{124+4*w}:{127+4*w}], v12 offset:{w*1024}")
    k.e("s_waitcnt lgkmcnt(0)")
    for r in range(4):
        k.e(f"v_add_f32 v{124+r}, v{124+r}, v{128+r}")
        k.e(f"v_add_f32 v{132+r}, v{132+r}, v{136+r}")
    for r in range(4):
        k.e(f"v_add_f32 v{124+r}, v{124+r}, v{132+r}")
    k.e("v_cvt_pk_bf16_f32 v140, v124, v125")
    k.e("v_cvt_pk_bf16_f32 v141, v126, v127")
    k.e("v_min_u32 v140, 0xfffffffe, v140")
    k.e("v_min_u32 v141, 0xfffffffe, v141")
    k.e("s_mov_b64 exec, s[80:81]")
    k.e("buffer_store_dwordx2 v[140:141], v13, s[60:63], s25 offen sc1")
    k.e("s_mov_b64 exec, -1")
    k.label(ynext)
    k.e("s_add_u32 s29, s29, 1")
    k.e(f"s_add_u32 s22, s22, {32*640}")
    k.e(f"s_add_u32 s23, s23, {32*640*16}")
    k.e(f"s_add_u32 s24, s24, {32*640*64}")
    k.e("s_add_u32 s25, s25, 10240")
    k.e(f"s_cmp_lt_u32 s29, {NS}")
    k.e(f"s_cbranch_scc1 {ly}")
    k.label(done)
    k.e("s_endpgm")
    return kernel_text(k, 512, 100, 256), f"; @launch kernel=rec_kernel grid=(104,1,1) block=(256,1,1) lds={LDS_TOTAL}"

def more_kernels():
    ks = [k_rec()]
    try:
        import kernels4
        ks += kernels4.more_kernels()
    except ImportError:
        pass
    return ks
```

```python
from asmlib import *
from gen import *
from kernels2 import WSG
from kernels3 import xred, fbits

def k_attn():
    k = K("attn_kernel")
    done = k.newlabel("done")
    k.e("s_cmp_ge_u32 s2, 256")
    k.e(f"s_cbranch_scc1 {done}")
    k.e(f"s_load_dwordx2 s[8:9], s[0:1], {KA_WS}")
    k.e(f"s_load_dwordx2 s[10:11], s[0:1], {KA_X}")
    k.e("v_lshrrev_b32 v1, 6, v0")
    k.e("v_and_b32 v2, 63, v0")
    k.e("v_and_b32 v3, 15, v0")
    k.e("v_bfe_u32 v4, v0, 4, 2")
    k.e("v_readfirstlane_b32 s74, v1")
    k.e("s_lshr_b32 s20, s2, 2")
    k.e("s_and_b32 s21, s2, 3")
    k.e("s_mul_i32 s21, s21, 160")
    k.e("v_cmp_le_u32 s[84:85], 32, v2")
    k.e("v_lshlrev_b32 v5, 2, v4")
    k.e("v_sub_u32 v5, v5, v3")
    for r in range(4):
        k.e(f"v_cmp_ge_i32 s[{40+2*r}:{41+2*r}], {-r}, v5")
    k.e("s_waitcnt lgkmcnt(0)")
    srd(k, 60, 8, WS_SIZE)
    srd(k, 64, 10, T*D*2)
    k.e("s_movk_i32 s3, 12288")
    k.e("v_mul_lo_u32 v6, v3, s3")
    k.e("v_lshl_add_u32 v6, v4, 4, v6")
    k.e("v_and_b32 v7, 7, v3")
    k.e("v_mul_u32_u24 v7, 384, v7")
    k.e("v_lshl_add_u32 v7, v4, 4, v7")
    k.e("v_lshlrev_b32 v252, 6, v3")
    k.e("v_lshl_add_u32 v252, v4, 4, v252")
    k.e("v_and_b32 v253, 1, v4")
    k.e("v_lshlrev_b32 v253, 3, v253")
    k.e("v_lshl_add_u32 v253, v3, 4, v253")
    k.e("v_mov_b32 v254, 0xff800000")
    k.e("s_lshl_b32 s22, s74, 3")
    k.e("s_add_u32 s23, s22, 8")
    for i in range(80):
        k.e(f"v_mov_b32 v{100+i}, 0")
    loop = k.newlabel("hloop")
    k.label(loop)
    k.e(f"s_mul_i32 s24, s20, {32*12288}")
    k.e("s_mul_i32 s3, s22, 384")
    k.e("s_add_u32 s24, s24, s3")
    k.e(f"s_add_u32 s25, s24, {WS_Q}")
    k.e(f"s_add_u32 s26, s24, {WS_K}")
    k.e("s_lshl_b32 s27, s20, 5")
    k.e("s_add_u32 s27, s27, s22")
    k.e("s_mul_i32 s28, s27, 3072")
    k.e(f"s_add_u32 s28, s28, {WS_KM}")
    k.e("s_mul_i32 s29, s27, 640")
    k.e("s_add_u32 s29, s29, s21")
    k.e("s_lshl_b32 s30, s29, 6")
    k.e(f"s_add_u32 s30, s30, {WS_VOX}")
    k.e("s_lshl_b32 s31, s29, 4")
    k.e(f"s_add_u32 s31, s31, {WS_VOM}")
    for qt in range(2):
        k.e(f"s_add_u32 s71, s25, {qt*16*12288}")
        for t in range(6):
            b = 20 + (qt*6 + t)*4
            k.e(f"buffer_load_dwordx4 v[{b}:{b+3}], v6, s[60:63], s71 offen offset:{t*64}")
    for t in range(6):
        b = 180 + t*4
        k.e(f"buffer_load_dwordx4 v[{b}:{b+3}], v7, s[60:63], s28 offen offset:{t*64}")
    for u in range(2):
        k.e(f"s_add_u32 s71, s26, {u*16*12288}")
        for t in range(6):
            b = 180 + ((u+1)*6 + t)*4
            k.e(f"buffer_load_dwordx4 v[{b}:{b+3}], v6, s[60:63], s71 offen offset:{t*64}")
    for dt in range(10):
        k.e(f"s_add_u32 s71, s30, {dt*1024}")
        k.e(f"buffer_load_dwordx4 a[{4*dt}:{4*dt+3}], v252, s[60:63], s71 offen")
        k.e(f"buffer_load_dwordx2 a[{40+2*dt}:{41+2*dt}], v253, s[60:63], s31 offen offset:{dt*256}")
    k.e("s_waitcnt vmcnt(20)")
    tiles = [(0,0),(1,0),(0,1),(1,1),(2,1)]
    sreg = {(T_,qt): 68 + 4*i for i,(T_,qt) in enumerate(tiles)}
    for t in range(6):
        for (T_, qt) in tiles:
            a = sreg[(T_,qt)]
            kb = 180 + (T_*6 + t)*4; qb = 20 + (qt*6 + t)*4
            c = "0" if t == 0 else f"v[{a}:{a+3}]"
            k.e(f"v_mfma_f32_16x16x32_bf16 v[{a}:{a+3}], v[{kb}:{kb+3}], v[{qb}:{qb+3}], {c}")
    k.nop(8)
    sc = fbits(192 ** -0.5)
    for i in range(0, 20, 2):
        a = 68 + i
        k.e(f"v_cvt_pk_bf16_f32 v88, v{a}, v{a+1}")
        k.e(f"v_lshlrev_b32 v{a}, 16, v88")
        k.e(f"v_and_b32 v{a+1}, 0xffff0000, v88")
        k.e(f"v_mul_f32 v{a}, 0x{sc:08x}, v{a}")
        k.e(f"v_mul_f32 v{a+1}, 0x{sc:08x}, v{a+1}")
        k.e(f"v_cvt_pk_bf16_f32 v88, v{a}, v{a+1}")
        k.e(f"v_lshlrev_b32 v{a}, 16, v88")
        k.e(f"v_and_b32 v{a+1}, 0xffff0000, v88")
    for qt in range(2):
        a = sreg[(0,qt)]
        for r in range(4):
            k.e(f"v_cndmask_b32 v{a+r}, v{a+r}, v254, s[84:85]")
        a = sreg[(qt+1, qt)]
        for r in range(4):
            k.e(f"v_cndmask_b32 v{a+r}, v254, v{a+r}, s[{40+2*r}:{41+2*r}]")
    for qt in range(2):
        rs = []
        for T_ in range(qt + 2):
            rs += [sreg[(T_,qt)] + r for r in range(4)]
        k.e(f"v_max3_f32 v88, v{rs[0]}, v{rs[1]}, v{rs[2]}")
        i = 3
        while i < len(rs):
            if i + 1 < len(rs): k.e(f"v_max3_f32 v88, v88, v{rs[i]}, v{rs[i+1]}"); i += 2
            else: k.e(f"v_max_f32 v88, v88, v{rs[i]}"); i += 1
        xred(k, 88, 89, "v_max_f32")
        k.e("v_mul_f32 v88, 0xbfb8aa3b, v88")
        k.e("s_mov_b32 s3, 0x3fb8aa3b")
        for r_ in rs: k.e(f"v_fma_f32 v{r_}, v{r_}, s3, v88")
        for r_ in rs: k.e(f"v_exp_f32 v{r_}, v{r_}")
        k.e("s_nop 0")
        k.e(f"v_add_f32 v89, v{rs[0]}, v{rs[1]}")
        for r_ in rs[2:]: k.e(f"v_add_f32 v89, v89, v{r_}")
        xred(k, 89, 90, "v_add_f32")
        k.e("v_rcp_f32 v89, v89")
        k.e("s_nop 0")
        for r_ in rs: k.e(f"v_mul_f32 v{r_}, v{r_}, v89")
        pm = 8 + 6*qt; px = 10 + 6*qt
        a = sreg[(0,qt)]
        k.e(f"v_cvt_pk_bf16_f32 v{pm}, v{a}, v{a+1}")
        k.e(f"v_cvt_pk_bf16_f32 v{pm+1}, v{a+2}, v{a+3}")
        a = sreg[(1,qt)]
        k.e(f"v_cvt_pk_bf16_f32 v{px}, v{a}, v{a+1}")
        k.e(f"v_cvt_pk_bf16_f32 v{px+1}, v{a+2}, v{a+3}")
        if qt == 1:
            a = sreg[(2,qt)]
            k.e(f"v_cvt_pk_bf16_f32 v{px+2}, v{a}, v{a+1}")
            k.e(f"v_cvt_pk_bf16_f32 v{px+3}, v{a+2}, v{a+3}")
        else:
            k.e(f"v_mov_b32 v{px+2}, 0")
            k.e(f"v_mov_b32 v{px+3}, 0")
    k.e("s_waitcnt vmcnt(0)")
    k.e("s_nop 1")
    for dt in range(10):
        for qt in range(2):
            a = 100 + (dt*2 + qt)*4
            pm = 8 + 6*qt; px = 10 + 6*qt
            k.e(f"v_mfma_f32_16x16x32_bf16 v[{a}:{a+3}], a[{4*dt}:{4*dt+3}], v[{px}:{px+3}], v[{a}:{a+3}]")
    for dt in range(10):
        for qt in range(2):
            a = 100 + (dt*2 + qt)*4
            pm = 8 + 6*qt
            k.e(f"v_mfma_f32_16x16x16_bf16 v[{a}:{a+3}], a[{40+2*dt}:{41+2*dt}], v[{pm}:{pm+1}], v[{a}:{a+3}]")
    k.e("s_add_u32 s22, s22, 1")
    k.e("s_cmp_lt_u32 s22, s23")
    k.e(f"s_cbranch_scc1 {loop}")
    k.nop(8)
    k.e("v_lshlrev_b32 v5, 4, v2")
    k.e("s_mul_i32 s3, s74, 20480")
    k.e("v_add_u32 v6, s3, v5")
    for tl in range(20):
        k.e(f"ds_write_b128 v6, v[{100+4*tl}:{103+4*tl}] offset:{tl*1024}")
    k.e("s_waitcnt lgkmcnt(0)")
    k.e("s_barrier")
    k.e("s_mul_i32 s3, s74, 5120")
    k.e("v_add_u32 v6, s3, v5")
    k.e("v_add_u32 v9, 40960, v6")
    for j in range(5):
        for w in range(4):
            k.e(f"ds_read_b128 v[{100+(j*4+w)*4}:{103+(j*4+w)*4}], v{6 if w < 2 else 9} offset:{(w%2)*20480 + j*1024}")
    k.e("s_movk_i32 s3, 1280")
    k.e("v_mul_lo_u32 v7, v3, s3")
    k.e("v_lshl_add_u32 v7, v4, 3, v7")
    k.e("v_lshlrev_b32 v8, 4, v4")
    for j in range(5):
        k.e(f"s_mul_i32 s30, s74, 5")
        k.e(f"s_add_u32 s30, s30, {j}")
        k.e("s_lshr_b32 s31, s30, 1")
        k.e("s_and_b32 s30, s30, 1")
        k.e("s_lshl_b32 s31, s31, 4")
        k.e("s_add_u32 s31, s31, s21")
        k.e("s_lshl_b32 s32, s20, 1")
        k.e("s_add_u32 s32, s32, s30")
        k.e(f"s_mul_i32 s32, s32, {16*1280}")
        k.e("s_lshl_b32 s33, s31, 1")
        k.e(f"s_add_u32 s{34+j}, s32, s33")
        k.e("s_lshl_b32 s33, s31, 2")
        k.e(f"s_add_u32 s33, s33, {2*2560}")
        k.e(f"buffer_load_dwordx2 v[{20+2*j}:{21+2*j}], v7, s[64:67], s{34+j} offen")
        k.e(f"buffer_load_dwordx4 v[{32+4*j}:{35+4*j}], v8, s[60:63], s33 offen")
    k.e("s_waitcnt vmcnt(0) lgkmcnt(0)")
    for j in range(5):
        b = 100 + j*16
        for r in range(4):
            k.e(f"v_add_f32 v{b+r}, v{b+r}, v{b+4+r}")
            k.e(f"v_add_f32 v{b+8+r}, v{b+8+r}, v{b+12+r}")
            k.e(f"v_add_f32 v{b+r}, v{b+r}, v{b+8+r}")
        for hh in range(2):
            r0, r1 = b + 2*hh, b + 2*hh + 1
            k.e(f"v_cvt_pk_bf16_f32 v60, v{r0}, v{r1}")
            k.e(f"v_lshlrev_b32 v{r0}, 16, v60")
            k.e(f"v_and_b32 v{r1}, 0xffff0000, v60")
            k.e(f"v_mul_f32 v{r0}, v{r0}, v{32+4*j+2*hh}")
            k.e(f"v_mul_f32 v{r1}, v{r1}, v{33+4*j+2*hh}")
            k.e(f"v_cvt_pk_bf16_f32 v60, v{r0}, v{r1}")
            k.e(f"v_lshlrev_b32 v{r0}, 16, v60")
            k.e(f"v_and_b32 v{r1}, 0xffff0000, v60")
            k.e(f"v_lshlrev_b32 v61, 16, v{20+2*j+hh}")
            k.e(f"v_and_b32 v62, 0xffff0000, v{20+2*j+hh}")
            k.e(f"v_add_f32 v{r0}, v{r0}, v61")
            k.e(f"v_add_f32 v{r1}, v{r1}, v62")
            k.e(f"v_cvt_pk_bf16_f32 v{64+2*j+hh}, v{r0}, v{r1}")
        k.e(f"s_add_u32 s71, s{34+j}, {WS_X1}")
        k.e(f"buffer_store_dwordx2 v[{64+2*j}:{65+2*j}], v7, s[60:63], s71 offen")
    k.label(done)
    k.e("s_endpgm")
    return kernel_text(k, 320, 100, 256), "; @launch kernel=attn_kernel grid=(256,1,1) block=(256,1,1) lds=81920"

def k_up(TS=16):
    g = WSG("up_kernel", 20, 2, [0,1,2,3], 64 // TS, 40960)
    k = g.k
    g.common_prologue(12*TS)
    k.e(f"s_load_dwordx2 s[10:11], s[0:1], {KA_W1}")
    k.e(f"s_load_dwordx2 s[12:13], s[0:1], {KA_W3}")
    k.e("s_mul_hi_u32 s17, s2, 0x15555556")
    k.e("s_mul_i32 s16, s17, 12")
    k.e("s_sub_u32 s16, s2, s16")
    k.e("s_lshl_b32 s19, s16, 7")
    k.e("s_lshl_b32 s3, s74, 5")
    k.e("s_add_u32 s19, s19, s3")
    k.e("s_waitcnt lgkmcnt(0)")
    srd(k, 60, 8, WS_SIZE)
    srd(k, 64, 10, D*F*2)
    srd(k, 84, 12, D*F*2)
    k.e("s_movk_i32 s3, 24576")
    k.e("v_mul_lo_u32 v5, v4, s3")
    k.e("v_lshl_add_u32 v5, v3, 2, v5")
    k.e("s_lshl_b32 s70, s19, 1")
    g.load_weights([(64, 5, 3072, 2, [0,1], 70), (84, 5, 3072, 2, [2,3], 70)])
    g.acc0 = 32; g.afr0 = 64
    k.e("v_mov_b32 v21, v20")
    k.e("v_add_u32 v22, 40960, v20")
    k.e(f"s_mul_i32 s20, s17, {(64//TS)*40960}")
    k.e(f"s_add_u32 s20, s20, {WS_H2F}")
    k.e("v_lshrrev_b32 v23, 2, v3")
    k.e("v_lshlrev_b32 v23, 8, v23")
    k.e("v_lshl_add_u32 v23, v4, 6, v23")
    k.e("v_and_b32 v24, 3, v3")
    k.e("v_lshl_add_u32 v23, v24, 2, v23")
    k.e("s_lshr_b32 s21, s19, 5")
    k.e("s_lshl_b32 s21, s21, 10")
    k.e(f"s_add_u32 s21, s21, {WS_G}")
    k.e(f"s_mul_i32 s22, s17, {128//TS}")
    def epi():
        k.e("s_lshl_b32 s3, s75, 1")
        k.e("s_add_u32 s3, s3, s22")
        k.e("s_mul_i32 s3, s3, 49152")
        k.e("s_add_u32 s3, s3, s21")
        for rt in range(2):
            a = g.acc0 + rt*16
            for r in range(4):
                k.e(f"v_cvt_pk_bf16_f32 v80, v{a+r}, v{a+4+r}")
                k.e(f"v_cvt_pk_bf16_f32 v81, v{a+8+r}, v{a+12+r}")
                k.e("v_lshlrev_b32 v82, 16, v80")
                k.e("v_and_b32 v83, 0xffff0000, v80")
                k.e("v_mul_f32 v84, 0xbfb8aa3b, v82")
                k.e("v_mul_f32 v85, 0xbfb8aa3b, v83")
                k.e("v_exp_f32 v84, v84")
                k.e("v_exp_f32 v85, v85")
                k.e("s_nop 0")
                k.e("v_add_f32 v84, 1.0, v84")
                k.e("v_add_f32 v85, 1.0, v85")
                k.e("v_rcp_f32 v84, v84")
                k.e("v_rcp_f32 v85, v85")
                k.e("s_nop 0")
                k.e("v_mul_f32 v82, v82, v84")
                k.e("v_mul_f32 v83, v83, v85")
                k.e("v_cvt_pk_bf16_f32 v80, v82, v83")
                k.e("v_lshlrev_b32 v82, 16, v80")
                k.e("v_and_b32 v83, 0xffff0000, v80")
                k.e("v_lshlrev_b32 v84, 16, v81")
                k.e("v_and_b32 v85, 0xffff0000, v81")
                k.e("v_mul_f32 v82, v82, v84")
                k.e("v_mul_f32 v83, v83, v85")
                d = 88 + rt*4 + r
                k.e(f"v_cvt_pk_bf16_f32 v{d}, v82, v83")
                k.e(f"s_add_u32 s71, s3, {rt*49152}")
                k.e(f"buffer_store_dword v{d}, v23, s[60:63], s71 offen offset:{r*16}")
    g.main_loop(20, 40960, epi, 8)
    k.label(g.done)
    k.e("s_endpgm")
    return kernel_text(k, 512, 100, 256), f"; @launch kernel=up_kernel grid=({12*TS},1,1) block=(256,1,1) lds=81920"

def k_down(TS=32):
    g = WSG("down_kernel", 48, 1, [0,1], 128 // TS, 49152)
    k = g.k
    g.common_prologue(5*TS)
    k.e(f"s_load_dwordx2 s[10:11], s[0:1], {KA_W2}")
    k.e(f"s_load_dwordx2 s[12:13], s[0:1], {KA_OUT}")
    k.e("s_mul_hi_u32 s17, s2, 0x33333334")
    k.e("s_mul_i32 s16, s17, 5")
    k.e("s_sub_u32 s16, s2, s16")
    k.e("s_lshl_b32 s19, s16, 7")
    k.e("s_lshl_b32 s3, s74, 5")
    k.e("s_add_u32 s19, s19, s3")
    k.e("s_waitcnt lgkmcnt(0)")
    srd(k, 60, 8, WS_SIZE)
    srd(k, 64, 10, F*D*2)
    srd(k, 84, 12, T*D*2)
    k.e("s_movk_i32 s3, 10240")
    k.e("v_mul_lo_u32 v5, v4, s3")
    k.e("v_lshl_add_u32 v5, v3, 2, v5")
    k.e("s_lshl_b32 s70, s19, 1")
    k.e("v_lshlrev_b32 v6, 3, v3")
    k.e("s_lshl_b32 s3, s19, 2")
    k.e(f"s_add_u32 s3, s3, {5*2560}")
    k.e("buffer_load_dwordx2 v[26:27], v6, s[60:63], s3 offen")
    g.load_weights([(64, 5, 1280, 2, [0,1], 70)])
    g.acc0 = 32; g.afr0 = 64
    k.e("v_mov_b32 v21, v20")
    k.e("v_add_u32 v22, 49152, v20")
    k.e(f"s_mul_i32 s20, s17, {(128//TS)*49152}")
    k.e(f"s_add_u32 s20, s20, {WS_G}")
    k.e("s_movk_i32 s3, 5120")
    k.e("v_mul_lo_u32 v23, v4, s3")
    k.e("v_lshl_add_u32 v23, v3, 2, v23")
    k.e(f"s_mul_i32 s22, s17, {128//TS}")
    def epi():
        k.e("s_add_u32 s3, s75, s22")
        k.e(f"s_mul_i32 s3, s3, {16*1280}")
        k.e("s_add_u32 s3, s3, s70")
        k.e(f"s_add_u32 s23, s3, {WS_X1}")
        for r in range(4):
            k.e(f"buffer_load_dword v{80+r}, v23, s[60:63], s23 offen offset:{r*1280}")
        a = g.acc0
        for r in range(4):
            k.e(f"v_cvt_pk_bf16_f32 v84, v{a+r}, v{a+4+r}")
            k.e("v_lshlrev_b32 v85, 16, v84")
            k.e("v_and_b32 v86, 0xffff0000, v84")
            k.e("v_mul_f32 v85, v85, v26")
            k.e("v_mul_f32 v86, v86, v27")
            k.e(f"v_cvt_pk_bf16_f32 v{88+r}, v85, v86")
        k.e("s_waitcnt vmcnt(0)")
        for r in range(4):
            k.e(f"v_lshlrev_b32 v85, 16, v{88+r}")
            k.e(f"v_and_b32 v86, 0xffff0000, v{88+r}")
            k.e(f"v_lshlrev_b32 v84, 16, v{80+r}")
            k.e(f"v_and_b32 v87, 0xffff0000, v{80+r}")
            k.e("v_add_f32 v85, v85, v84")
            k.e("v_add_f32 v86, v86, v87")
            k.e(f"v_cvt_pk_bf16_f32 v{92+r}, v85, v86")
            k.e(f"buffer_store_dword v{92+r}, v23, s[84:87], s3 offen offset:{r*1280}")
    g.main_loop(20, 49152, epi, 4)
    k.label(g.done)
    k.e("s_endpgm")
    return kernel_text(k, 512, 100, 256), f"; @launch kernel=down_kernel grid=({5*TS},1,1) block=(256,1,1) lds=98304"

def more_kernels():
    return [k_attn(), k_ln("ln2_kernel", False), k_up(), k_down()]
```

```python
import sys
from asmlib import *

NAME = "adaLN_cond__memory_aug_recurrent_mem_tr__glu_gated_swiglu__prompt"
T, D, H, E, M, SEG, NS, F = 2048, 640, 32, 192, 8, 32, 64, 1536

KA_X, KA_MEM0, KA_WQ, KA_WK, KA_WV, KA_WO = 0, 8, 16, 24, 32, 40
KA_W1, KA_W3, KA_W2, KA_C, KA_WMOD, KA_OUT, KA_DBG, KA_WS = 64, 72, 80, 88, 96, 104, 112, 120

def al(x): return (x + 4095) // 4096 * 4096
WS_MOD = 0
WS_H1F = 0x4000
WS_H2F = al(WS_H1F + T*D*2)
WS_X1  = al(WS_H2F + T*D*2)
WS_Q   = al(WS_X1 + T*D*2)
WS_K   = al(WS_Q + T*H*E*2)
WS_VF  = al(WS_K + T*H*E*2)
WS_VOX = al(WS_VF + T*H*E*2)
WS_VOM = al(WS_VOX + NS*H*D*32*2)
WS_PB  = WS_VOM + NS*H*D*8*2
WS_MEM = WS_PB + NS*H*640
WS_KM  = al(WS_MEM + (NS+1)*10240)
WS_G   = al(WS_KM + NS*H*8*E*2)
WS_END = al(WS_G + T*F*2)
WS_SIZE = 268435456
assert WS_END <= WS_SIZE

def srd(k, d, base, nbytes):
    k.e(f"s_mov_b32 s{d}, s{base}")
    k.e(f"s_and_b32 s{d+1}, s{base+1}, 0xffff")
    k.e(f"s_mov_b32 s{d+2}, {nbytes}")
    k.e(f"s_mov_b32 s{d+3}, 0x00020000")

def k_mod():
    k = K("mod_kernel")
    done = k.newlabel("done")
    k.e("s_cmp_ge_u32 s2, 15")
    k.e(f"s_cbranch_scc1 {done}")
    k.e(f"s_load_dwordx2 s[4:5], s[0:1], {KA_C}")
    k.e(f"s_load_dwordx2 s[6:7], s[0:1], {KA_WMOD}")
    k.e(f"s_load_dwordx2 s[8:9], s[0:1], {KA_WS}")
    k.e("v_lshrrev_b32 v1, 6, v0")
    k.e("v_and_b32 v2, 63, v0")
    k.e("s_nop 0")
    k.e("v_readfirstlane_b32 s10, v1")
    k.e("s_waitcnt lgkmcnt(0)")
    srd(k, 12, 4, 1280)
    srd(k, 16, 6, 640*7680)
    srd(k, 60, 8, WS_SIZE)
    k.e("s_mul_i32 s11, s10, 40")
    k.e("v_add_u32 v3, s11, v2")
    k.e("v_lshlrev_b32 v3, 1, v3")
    k.e("buffer_load_ushort v4, v3, s[12:15], 0 offen")
    k.e("s_lshl_b32 s3, s2, 9")
    k.e("v_lshlrev_b32 v6, 3, v2")
    k.e("v_add_u32 v6, s3, v6")
    k.e("s_mul_i32 s64, s11, 7680")
    for i in range(40):
        k.e(f"buffer_load_dwordx2 v[{20+2*i}:{21+2*i}], v6, s[16:19], s64 offen")
        k.e("s_add_u32 s64, s64, 7680")
    k.e("s_waitcnt vmcnt(40)")
    k.e("v_lshlrev_b32 v4, 16, v4")
    k.e("v_mul_f32 v5, 0xbfb8aa3b, v4")
    k.e("v_exp_f32 v5, v5")
    k.e("s_nop 0")
    k.e("v_add_f32 v5, 1.0, v5")
    k.e("v_rcp_f32 v5, v5")
    k.e("s_nop 0")
    k.e("v_mul_f32 v5, v4, v5")
    k.e("v_cvt_pk_bf16_f32 v5, v5, v5")
    k.e("v_lshlrev_b32 v5, 16, v5")
    k.e("s_nop 0")
    for i in range(40):
        k.e(f"v_readlane_b32 s{20+i}, v5, {i}")
    for j in range(4):
        k.e(f"v_mov_b32 v{8+j}, 0")
    k.e("s_waitcnt vmcnt(0)")
    for i in range(40):
        a, b = 20+2*i, 21+2*i
        k.e(f"v_lshlrev_b32 v12, 16, v{a}")
        k.e(f"v_and_b32 v13, 0xffff0000, v{a}")
        k.e(f"v_lshlrev_b32 v14, 16, v{b}")
        k.e(f"v_and_b32 v15, 0xffff0000, v{b}")
        for j in range(4):
            k.e(f"v_fmac_f32 v{8+j}, s{20+i}, v{12+j}")
    k.e("v_lshlrev_b32 v16, 4, v0")
    k.e("ds_write_b128 v16, v[8:11]")
    k.e("s_waitcnt lgkmcnt(0)")
    k.e("s_barrier")
    k.e("s_cmp_ge_u32 s10, 4")
    k.e(f"s_cbranch_scc1 {done}")
    k.e("v_lshlrev_b32 v16, 2, v0")
    for w in range(16):
        k.e(f"ds_read_b32 v{20+w}, v16 offset:{w*1024}")
    k.e("s_waitcnt lgkmcnt(0)")
    for w in range(1, 16):
        k.e(f"v_add_f32 v20, v20, v{20+w}")
    k.e("v_cvt_pk_bf16_f32 v20, v20, v20")
    k.e("v_lshlrev_b32 v20, 16, v20")
    k.e("s_lshl_b32 s3, s2, 8")
    k.e("v_add_u32 v17, s3, v0")
    k.e("v_add_f32 v21, 1.0, v20")
    k.e("v_cvt_pk_bf16_f32 v21, v21, v21")
    k.e("v_lshlrev_b32 v21, 16, v21")
    k.e("v_subrev_u32 v18, 640, v17")
    k.e("v_subrev_u32 v19, 2560, v17")
    k.e("v_min_u32 v18, v18, v19")
    k.e("v_cmp_gt_u32 vcc, 640, v18")
    k.e("s_nop 1")
    k.e("v_cndmask_b32 v20, v20, v21, vcc")
    k.e("v_lshlrev_b32 v17, 2, v17")
    k.e(f"buffer_store_dword v20, v17, s[60:63], 0 offen")
    k.label(done)
    k.e("s_endpgm")
    return kernel_text(k, 104, 80), "; @launch kernel=mod_kernel grid=(15,1,1) block=(1024,1,1) lds=16384"

def k_ln(name, first):
    k = K(name)
    done = k.newlabel("done")
    clr = k.newlabel("clr")
    NCLR = 224
    k.e(f"s_load_dwordx2 s[4:5], s[0:1], {KA_X}")
    k.e(f"s_load_dwordx2 s[6:7], s[0:1], {KA_MEM0}")
    k.e(f"s_load_dwordx2 s[8:9], s[0:1], {KA_WS}")
    k.e(f"s_cmp_ge_u32 s2, {32 + (NCLR if first else 0)}")
    k.e(f"s_cbranch_scc1 {done}")
    k.e("s_waitcnt lgkmcnt(0)")
    srd(k, 60, 8, WS_SIZE)
    if first:
        srd(k, 12, 4, T*D*2)
        k.e("s_cmp_ge_u32 s2, 32")
        k.e(f"s_cbranch_scc1 {clr}")
    k.e("v_lshrrev_b32 v1, 6, v0")
    k.e("v_and_b32 v2, 63, v0")
    k.e("v_and_b32 v3, 15, v0")
    k.e("v_bfe_u32 v4, v0, 4, 2")
    k.e("s_nop 0")
    k.e("v_readfirstlane_b32 s10, v1")
    k.e("s_lshl_b32 s11, s2, 2")
    k.e("s_add_u32 s11, s11, s10")
    k.e("s_lshl_b32 s3, s11, 4")
    k.e("v_add_u32 v5, s3, v3")
    k.e("s_movk_i32 s3, 1280")
    k.e("v_mul_lo_u32 v5, v5, s3")
    k.e("v_lshl_add_u32 v5, v4, 4, v5")
    if first:
        for kt in range(20):
            k.e(f"buffer_load_dwordx4 v[{40+4*kt}:{43+4*kt}], v5, s[12:15], 0 offen offset:{kt*64}")
    else:
        k.e(f"s_mov_b32 s3, {WS_X1}")
        for kt in range(20):
            k.e(f"buffer_load_dwordx4 v[{40+4*kt}:{43+4*kt}], v5, s[60:63], s3 offen offset:{kt*64}")
    k.e("v_mov_b32 v6, 0")
    k.e("v_mov_b32 v7, 0")
    k.e("s_waitcnt vmcnt(0)")
    for r in range(40, 120):
        k.e(f"v_lshlrev_b32 v8, 16, v{r}")
        k.e(f"v_and_b32 v9, 0xffff0000, v{r}")
        k.e("v_add_f32 v6, v6, v8")
        k.e("v_add_f32 v7, v7, v9")
    k.e("v_add_f32 v6, v6, v7")
    def xred(v, tmp):
        k.e(f"v_mov_b32 v{tmp}, v{v}")
        k.e("s_nop 1")
        k.e(f"v_permlane16_swap_b32 v{v}, v{tmp}")
        k.e("s_nop 1")
        k.e(f"v_add_f32 v{v}, v{v}, v{tmp}")
        k.e(f"v_mov_b32 v{tmp}, v{v}")
        k.e("s_nop 1")
        k.e(f"v_permlane32_swap_b32 v{v}, v{tmp}")
        k.e("s_nop 1")
        k.e(f"v_add_f32 v{v}, v{v}, v{tmp}")
    xred(6, 7)
    k.e(f"v_mul_f32 v6, 0x{(lambda f: __import__('struct').unpack('<I', __import__('struct').pack('<f', f))[0])(1.0/640):08x}, v6")
    k.e("v_mov_b32 v10, 0")
    k.e("v_mov_b32 v11, 0")
    for r in range(40, 120):
        k.e(f"v_lshlrev_b32 v8, 16, v{r}")
        k.e(f"v_and_b32 v9, 0xffff0000, v{r}")
        k.e("v_sub_f32 v8, v8, v6")
        k.e("v_sub_f32 v9, v9, v6")
        k.e("v_fmac_f32 v10, v8, v8")
        k.e("v_fmac_f32 v11, v9, v9")
    k.e("v_add_f32 v10, v10, v11")
    xred(10, 11)
    k.e(f"v_mov_b32 v11, 0x3727c5ac")
    k.e(f"v_fmac_f32 v11, 0x{(lambda f: __import__('struct').unpack('<I', __import__('struct').pack('<f', f))[0])(1.0/640):08x}, v10")
    k.e("v_rsq_f32 v11, v11")
    sh = (0 if first else 3) * 2560
    sc = sh + 2560
    k.e("v_lshlrev_b32 v12, 5, v4")
    k.e("s_mul_i32 s3, s11, 20480")
    k.e(f"s_add_u32 s3, s3, {WS_H1F if first else WS_H2F}")
    k.e("v_lshlrev_b32 v13, 4, v2")
    for kt in range(20):
        b = 120 + (kt % 2) * 16
        k.e(f"s_mov_b32 s21, {sh + kt*128}")
        k.e(f"buffer_load_dwordx4 v[{b}:{b+3}], v12, s[60:63], s21 offen")
        k.e(f"buffer_load_dwordx4 v[{b+4}:{b+7}], v12, s[60:63], s21 offen offset:16")
        k.e(f"s_mov_b32 s20, {sc + kt*128}")
        k.e(f"buffer_load_dwordx4 v[{b+8}:{b+11}], v12, s[60:63], s20 offen")
        k.e(f"buffer_load_dwordx4 v[{b+12}:{b+15}], v12, s[60:63], s20 offen offset:16")
        k.e("s_waitcnt vmcnt(0)")
        for d in range(4):
            r = 40 + 4*kt + d
            k.e(f"v_lshlrev_b32 v8, 16, v{r}")
            k.e(f"v_and_b32 v9, 0xffff0000, v{r}")
            k.e("v_sub_f32 v8, v8, v6")
            k.e("v_sub_f32 v9, v9, v6")
            k.e("v_mul_f32 v8, v8, v11")
            k.e("v_mul_f32 v9, v9, v11")
            k.e(f"v_fma_f32 v8, v8, v{b+8+2*d}, v{b+2*d}")
            k.e(f"v_fma_f32 v9, v9, v{b+9+2*d}, v{b+1+2*d}")
            k.e(f"v_cvt_pk_bf16_f32 v{r}, v8, v9")
        k.e(f"buffer_store_dwordx4 v[{40+4*kt}:{43+4*kt}], v13, s[60:63], s3 offen")
        k.e("s_add_u32 s3, s3, 1024")
    k.e(f"s_branch {done}")
    if first:
        k.label(clr)
        total = (WS_MEM + 65*10240) - WS_VOM
        per = (total + NCLR*4096 - 1) // (NCLR*4096)
        k.e("s_sub_u32 s10, s2, 32")
        k.e(f"s_mul_i32 s11, s10, {per*4096}")
        k.e(f"s_add_u32 s11, s11, {WS_VOM}")
        k.e("v_lshlrev_b32 v1, 4, v0")
        k.e("v_add_u32 v1, s11, v1")
        for j in range(4):
            k.e(f"v_mov_b32 v{4+j}, -1")
        k.e("s_mov_b32 s64, s60")
        k.e("s_mov_b32 s65, s61")
        k.e(f"s_mov_b32 s66, {WS_MEM + 65*10240}")
        k.e("s_mov_b32 s67, 0x00020000")
        k.e(f"s_mov_b32 s20, {WS_MEM}")
        k.e("s_mov_b64 s[22:23], exec")
        for i in range(per):
            k.e("v_subrev_u32 v2, s20, v1")
            k.e("v_cmp_le_u32 vcc, 0x2800, v2")
            k.e("s_and_b64 exec, s[22:23], vcc")
            k.e("buffer_store_dwordx4 v[4:7], v1, s[64:67], 0 offen")
            k.e("s_mov_b64 exec, s[22:23]")
            k.e("v_add_u32 v1, 0x1000, v1")
        k.e("s_cmp_lg_u32 s2, 32")
        k.e(f"s_cbranch_scc1 {done}")
        srd(k, 64, 6, 10240)
        for rep in range(3):
            k.e(f"v_add_u32 v8, {rep*256}, v0")
            k.e("v_lshlrev_b32 v9, 4, v8")
            k.e("buffer_load_dwordx4 v[12:15], v9, s[64:67], 0 offen")
            k.e("v_mul_u32_u24 v10, 205, v8")
            k.e("v_lshrrev_b32 v10, 14, v10")
            k.e("v_mul_u32_u24 v11, 80, v10")
            k.e("v_sub_u32 v11, v8, v11")
            k.e("v_lshrrev_b32 v16, 1, v11")
            k.e("v_and_b32 v17, 1, v11")
            k.e("v_lshlrev_b32 v16, 8, v16")
            k.e("v_lshl_add_u32 v16, v10, 5, v16")
            k.e("v_lshl_add_u32 v16, v17, 4, v16")
            k.e("v_cmp_gt_u32 vcc, 640, v8")
            k.e("s_and_b64 exec, s[22:23], vcc")
            k.e("s_waitcnt vmcnt(0)")
            k.e(f"buffer_store_dwordx4 v[12:15], v16, s[60:63], s20 offen")
            k.e("s_mov_b64 exec, s[22:23]")
            k.e("s_nop 1")
    k.label(done)
    k.e("s_endpgm")
    g = 32 + (NCLR if first else 0)
    return kernel_text(k, 160, 80), f"; @launch kernel={name} grid=({g},1,1) block=(256,1,1) lds=0"

HEADER = open("cdna_kernels/" + NAME + ".s.ref").read().split("; Override launch geometry")[0]

def build(kernels):
    launches = [l for _, l in kernels]
    seen = set(); body = []
    for t, l in kernels:
        nm = l.split("kernel=")[1].split()[0]
        if nm in seen: continue
        seen.add(nm); body.append(t)
    out = HEADER + "\n".join(launches) + "\n" + '.amdgcn_target "amdgcn-amd-amdhsa--gfx950"\n' + "\n".join(body)
    return out

if __name__ == "__main__":
    import kernels2
    ks = kernels2.all_kernels()
    txt = build(ks)
    path = sys.argv[1] if len(sys.argv) > 1 else "cdna_kernels/" + NAME + ".s"
    open(path, "w").write(txt)
    print("wrote", path, len(txt))
```

```python
from mega import *
from kernels3 import xred, fbits
C_MOD, C_LN, C_CLR = 1, 2, 3
N_MOD, N_LN, N_CLR = 30, 128, 256

def cnt_add(k, idx, tmp=5):
    k.e("s_waitcnt vmcnt(0)")
    k.e("s_barrier")
    sk = k.newlabel("ca")
    k.e("s_cmp_lg_u32 s74, 0")
    k.e(f"s_cbranch_scc1 {sk}")
    k.e(f"v_mov_b32 v{tmp}, 1")
    k.e(f"v_mov_b32 v{tmp+1}, {idx*4}")
    k.e("s_mov_b64 exec, 1")
    k.e(f"buffer_atomic_add v{tmp}, v{tmp+1}, s[88:91], 0 offen sc1")
    k.e("s_mov_b64 exec, -1")
    k.label(sk)

def cnt_add_wave(k, idx, tmp=5):
    k.e("s_waitcnt vmcnt(0)")
    k.e(f"v_mov_b32 v{tmp}, 1")
    k.e(f"v_mov_b32 v{tmp+1}, {idx*4}")
    k.e("s_mov_b64 exec, 1")
    k.e(f"buffer_atomic_add v{tmp}, v{tmp+1}, s[88:91], 0 offen sc1")
    k.e("s_mov_b64 exec, -1")

def cnt_wait(k, idx, n, tmp=5):
    lp = k.newlabel("cw"); ok = k.newlabel("cwo")
    k.e(f"v_mov_b32 v{tmp+1}, {idx*4}")
    k.e("s_mov_b32 s69, 0")
    k.label(lp)
    k.e(f"buffer_load_dword v{tmp}, v{tmp+1}, s[88:91], 0 offen sc1")
    k.e("s_add_u32 s69, s69, 1")
    k.e(f"s_cmp_ge_u32 s69, {SPIN_LIMIT*16}")
    k.e(f"s_cbranch_scc1 {ok}")
    k.e("s_waitcnt vmcnt(0)")
    k.e(f"v_cmp_gt_u32 vcc, {n}, v{tmp}")
    k.e(f"s_cbranch_vccz {ok}")
    k.e("s_sleep 2")
    k.e(f"s_branch {lp}")
    k.label(ok)

def emit_mod(k, blk_s):
    k.e(f"s_load_dwordx2 s[4:5], s[0:1], {KA_C}")
    k.e(f"s_load_dwordx2 s[6:7], s[0:1], {KA_WMOD}")
    k.e("s_waitcnt lgkmcnt(0)")
    srd(k, 12, 4, 1280)
    srd(k, 16, 6, 640*7680)
    k.e("s_mul_i32 s11, s74, 160")
    for j in range(3):
        k.e(f"v_add_u32 v5, {64*j}, v2")
        k.e("v_add_u32 v5, s11, v5")
        k.e("v_lshlrev_b32 v5, 1, v5")
        k.e(f"buffer_load_ushort v{8+j}, v5, s[12:15], 0 offen")
    k.e(f"s_lshl_b32 s3, s{blk_s}, 8")
    k.e("v_lshlrev_b32 v6, 2, v2")
    k.e("v_add_u32 v6, s3, v6")
    k.e("s_mul_i32 s10, s11, 7680")
    for i in range(160):
        k.e(f"buffer_load_dword v{40+i}, v6, s[16:19], s10 offen")
        k.e("s_add_u32 s10, s10, 7680")
    k.e("s_waitcnt vmcnt(63)")
    for j in range(3):
        r = 8 + j
        k.e(f"v_lshlrev_b32 v{r}, 16, v{r}")
        k.e(f"v_mul_f32 v5, 0xbfb8aa3b, v{r}")
        k.e("v_exp_f32 v5, v5")
        k.e("s_nop 0")
        k.e("v_add_f32 v5, 1.0, v5")
        k.e("v_rcp_f32 v5, v5")
        k.e("s_nop 0")
        k.e(f"v_mul_f32 v5, v{r}, v5")
        k.e("v_cvt_pk_bf16_f32 v5, v5, v5")
        k.e(f"v_lshlrev_b32 v{r}, 16, v5")
    for j in range(2): k.e(f"v_mov_b32 v{12+j}, 0")
    k.e("s_waitcnt vmcnt(0)")
    for ch in range(5):
        for i in range(32):
            row = ch*32 + i
            k.e(f"v_readlane_b32 s{20+i}, v{8 + row//64}, {row % 64}")
        for i in range(32):
            a_ = 40 + ch*32 + i
            k.e(f"v_lshlrev_b32 v16, 16, v{a_}")
            k.e(f"v_and_b32 v17, 0xffff0000, v{a_}")
            k.e(f"v_fmac_f32 v12, s{20+i}, v16")
            k.e(f"v_fmac_f32 v13, s{20+i}, v17")
    k.e("v_lshlrev_b32 v16, 3, v0")
    k.e("ds_write_b64 v16, v[12:13]")
    k.e("s_waitcnt lgkmcnt(0)")
    k.e("s_barrier")
    k.e("v_and_b32 v16, 127, v0")
    k.e("v_lshlrev_b32 v16, 2, v16")
    for w in range(4):
        k.e(f"ds_read_b32 v{20+w}, v16 offset:{w*512}")
    k.e("s_waitcnt lgkmcnt(0)")
    for w in range(1, 4):
        k.e(f"v_add_f32 v20, v20, v{20+w}")
    k.e("v_cvt_pk_bf16_f32 v20, v20, v20")
    k.e("v_lshlrev_b32 v20, 16, v20")
    k.e(f"s_lshl_b32 s3, s{blk_s}, 7")
    k.e("v_and_b32 v17, 127, v0")
    k.e("v_add_u32 v17, s3, v17")
    k.e("v_add_f32 v21, 1.0, v20")
    k.e("v_cvt_pk_bf16_f32 v21, v21, v21")
    k.e("v_lshlrev_b32 v21, 16, v21")
    k.e("v_subrev_u32 v18, 640, v17")
    k.e("v_subrev_u32 v19, 2560, v17")
    k.e("v_min_u32 v18, v18, v19")
    k.e("v_cmp_gt_u32 vcc, 640, v18")
    k.e("s_nop 1")
    k.e("v_cndmask_b32 v20, v20, v21, vcc")
    k.e("v_lshlrev_b32 v17, 2, v17")
    k.e("buffer_store_dword v20, v17, s[60:63], 0 offen sc1")
    cnt_add(k, C_MOD)
    k.e("v_lshlrev_b32 v20, 4, v2")

def emit_clear(k, idx_s):
    total = (WS_MEM + 65*10240) - WS_VOM
    per = (total + N_CLR*4096 - 1) // (N_CLR*4096)
    k.e(f"s_mul_i32 s11, s{idx_s}, {per*4096}")
    k.e(f"s_add_u32 s11, s11, {WS_VOM}")
    k.e("v_lshlrev_b32 v1, 4, v0")
    k.e("v_add_u32 v1, s11, v1")
    for j in range(4): k.e(f"v_mov_b32 v{8+j}, -1")
    k.e("s_mov_b32 s64, s60"); k.e("s_mov_b32 s65, s61")
    k.e(f"s_mov_b32 s66, {WS_MEM + 65*10240}")
    k.e("s_mov_b32 s67, 0x00020000")
    k.e(f"s_mov_b32 s10, {WS_MEM}")
    lp = k.newlabel("clr")
    k.e("s_mov_b32 s12, 0")
    k.label(lp)
    k.e("v_subrev_u32 v5, s10, v1")
    k.e("v_cmp_le_u32 vcc, 0x2800, v5")
    k.e("s_and_b64 exec, exec, vcc")
    k.e("buffer_store_dwordx4 v[8:11], v1, s[64:67], 0 offen sc1")
    k.e("s_mov_b64 exec, -1")
    k.e("v_add_u32 v1, 0x1000, v1")
    k.e("s_add_u32 s12, s12, 1")
    k.e(f"s_cmp_lt_u32 s12, {per}")
    k.e(f"s_cbranch_scc1 {lp}")
    accb = 64*32*640*4
    per2 = accb // (N_CLR*4096)
    assert per2*N_CLR*4096 == accb
    k.e(f"s_mul_i32 s11, s{idx_s}, {per2*4096}")
    k.e(f"s_add_u32 s11, s11, {WS_ACC}")
    k.e("v_lshlrev_b32 v1, 4, v0")
    for j in range(4): k.e(f"v_mov_b32 v{8+j}, 0")
    for i in range(per2):
        k.e("buffer_store_dwordx4 v[8:11], v1, s[60:63], s11 offen sc1")
        k.e("s_add_u32 s11, s11, 4096")
    sk = k.newlabel("clr0")
    k.e(f"s_cmp_lg_u32 s{idx_s}, 0")
    k.e(f"s_cbranch_scc1 {sk}")
    k.e(f"s_mov_b32 s11, {WS_FLAGS}")
    k.e("buffer_store_dwordx4 v[8:11], v1, s[60:63], s11 offen sc1")
    k.e(f"s_load_dwordx2 s[6:7], s[0:1], {KA_MEM0}")
    k.e("s_waitcnt lgkmcnt(0)")
    srd(k, 64, 6, 10240)
    for rep in range(3):
        k.e(f"v_add_u32 v8, {rep*256}, v0")
        k.e("v_lshlrev_b32 v9, 4, v8")
        k.e("buffer_load_dwordx4 v[12:15], v9, s[64:67], 0 offen")
        k.e("v_mul_u32_u24 v10, 205, v8")
        k.e("v_lshrrev_b32 v10, 14, v10")
        k.e("v_mul_u32_u24 v11, 80, v10")
        k.e("v_sub_u32 v11, v8, v11")
        k.e("v_lshrrev_b32 v16, 1, v11")
        k.e("v_and_b32 v17, 1, v11")
        k.e("v_lshlrev_b32 v16, 8, v16")
        k.e("v_lshl_add_u32 v16, v10, 5, v16")
        k.e("v_lshl_add_u32 v16, v17, 4, v16")
        k.e("v_cmp_gt_u32 vcc, 640, v8")
        k.e("s_and_b64 exec, exec, vcc")
        k.e("s_waitcnt vmcnt(0)")
        k.e("buffer_store_dwordx4 v[12:15], v16, s[60:63], s10 offen sc1")
        k.e("s_mov_b64 exec, -1")
        k.e("s_nop 1")
    k.label(sk)
    cnt_add(k, C_CLR)

def emit_ln1(k, tile_s):
    inv = fbits(1.0/640)
    sk = k.newlabel("ln1s")
    k.e(f"s_cmp_ge_u32 s{tile_s}, 128")
    k.e(f"s_cbranch_scc1 {sk}")
    k.e(f"s_load_dwordx2 s[4:5], s[0:1], {KA_X}")
    k.e("s_waitcnt lgkmcnt(0)")
    srd(k, 12, 4, T*D*2)
    k.e(f"s_lshl_b32 s3, s{tile_s}, 4")
    k.e("v_add_u32 v5, s3, v3")
    k.e("s_movk_i32 s3, 1280")
    k.e("v_mul_lo_u32 v5, v5, s3")
    k.e("v_lshl_add_u32 v5, v4, 4, v5")
    for kt in range(20):
        k.e(f"buffer_load_dwordx4 v[{40+4*kt}:{43+4*kt}], v5, s[12:15], 0 offen offset:{kt*64}")
    k.e("v_mov_b32 v6, 0"); k.e("v_mov_b32 v7, 0")
    k.e("s_waitcnt vmcnt(0)")
    for r in range(40, 120):
        k.e(f"v_lshlrev_b32 v8, 16, v{r}")
        k.e(f"v_and_b32 v9, 0xffff0000, v{r}")
        k.e("v_add_f32 v6, v6, v8")
        k.e("v_add_f32 v7, v7, v9")
    k.e("v_add_f32 v6, v6, v7")
    xred(k, 6, 7, "v_add_f32")
    k.e(f"v_mul_f32 v6, 0x{inv:08x}, v6")
    k.e("v_mov_b32 v10, 0"); k.e("v_mov_b32 v11, 0")
    for r in range(40, 120):
        k.e(f"v_lshlrev_b32 v8, 16, v{r}")
        k.e(f"v_and_b32 v9, 0xffff0000, v{r}")
        k.e("v_sub_f32 v8, v8, v6")
        k.e("v_sub_f32 v9, v9, v6")
        k.e("v_fmac_f32 v10, v8, v8")
        k.e("v_fmac_f32 v11, v9, v9")
    k.e("v_add_f32 v10, v10, v11")
    xred(k, 10, 11, "v_add_f32")
    k.e("v_mov_b32 v11, 0x3727c5ac")
    k.e(f"v_fmac_f32 v11, 0x{inv:08x}, v10")
    k.e("v_rsq_f32 v11, v11")
    k.label(sk)
    k.e("v_mov_b32 v30, v6")
    k.e("v_mov_b32 v31, v11")
    emit_clear(k, 2)
    k.e("v_mov_b32 v6, v30")
    k.e("v_mov_b32 v11, v31")
    sk = k.newlabel("ln1s2")
    k.e(f"s_cmp_ge_u32 s{tile_s}, 128")
    k.e(f"s_cbranch_scc1 {sk}")
    cnt_wait(k, C_MOD, N_MOD, tmp=14)
    k.e("v_lshlrev_b32 v12, 5, v4")
    k.e(f"s_mul_i32 s3, s{tile_s}, 20480")
    k.e(f"s_add_u32 s3, s3, {WS_H1F}")
    k.e("v_lshlrev_b32 v13, 4, v2")
    for kt in range(20):
        k.e(f"buffer_load_dwordx4 a[{16*(kt%10)}:{16*(kt%10)+3}], v12, s[60:63], 0 offen offset:{kt*128}")
        k.e(f"buffer_load_dwordx4 a[{16*(kt%10)+4}:{16*(kt%10)+7}], v12, s[60:63], 0 offen offset:{kt*128+16}")
        k.e(f"s_mov_b32 s71, {2560 + kt*128}")
        k.e(f"buffer_load_dwordx4 a[{16*(kt%10)+8}:{16*(kt%10)+11}], v12, s[60:63], s71 offen")
        k.e(f"buffer_load_dwordx4 a[{16*(kt%10)+12}:{16*(kt%10)+15}], v12, s[60:63], s71 offen offset:16")
        if kt % 10 == 9:
            k.e("s_waitcnt vmcnt(0)")
            for k2 in range(kt - 9, kt + 1):
                b = 16*(k2 % 10)
                for d in range(4):
                    r = 40 + 4*k2 + d
                    k.e(f"v_lshlrev_b32 v8, 16, v{r}")
                    k.e(f"v_and_b32 v9, 0xffff0000, v{r}")
                    k.e(f"v_accvgpr_read_b32 v16, a{b+2*d}")
                    k.e(f"v_accvgpr_read_b32 v17, a{b+2*d+1}")
                    k.e(f"v_accvgpr_read_b32 v18, a{b+8+2*d}")
                    k.e(f"v_accvgpr_read_b32 v19, a{b+9+2*d}")
                    k.e("v_sub_f32 v8, v8, v6")
                    k.e("v_sub_f32 v9, v9, v6")
                    k.e("v_mul_f32 v8, v8, v11")
                    k.e("v_mul_f32 v9, v9, v11")
                    k.e("v_fma_f32 v8, v8, v18, v16")
                    k.e("v_fma_f32 v9, v9, v19, v17")
                    k.e(f"v_cvt_pk_bf16_f32 v{r}, v8, v9")
                k.e(f"buffer_store_dwordx4 v[{40+4*k2}:{43+4*k2}], v13, s[60:63], s3 offen sc1")
                k.e("s_add_u32 s3, s3, 1024")
    cnt_add_wave(k, C_LN)
    k.label(sk)
```

```python
from asmlib import *
from gen import *
import struct
def fbits(f): return struct.unpack('<I', struct.pack('<f', f))[0]

class WSG:
    def __init__(self, name, KS, RT, tiles, nstage, lds_stage_bytes):
        self.k = K(name); self.KS = KS; self.RT = RT; self.tiles = tiles; self.nstage = nstage
        self.NT = len(tiles)
        nfr = self.NT * KS
        self.wreg = {}
        nag = min(nfr, 64)
        rem = nfr - nag
        self.vtop = 256 - 4*rem
        idx = 0
        for t in range(self.NT):
            for kt in range(KS):
                if idx < nag: self.wreg[(t, kt)] = 256 + 4*idx
                else: self.wreg[(t, kt)] = self.vtop + 4*(idx - nag)
                idx += 1
        self.stage_bytes = lds_stage_bytes

    def load_weights(self, blocks, raw0=32):
        k = self.k
        for (srdreg, voff, rowstride, cpl, tids, sbase) in blocks:
            nd = cpl // 2
            CH = 4 if nd == 1 else 2
            DEPTH = 3
            csz = CH*8*nd
            chunks = [list(range(c, min(self.KS, c + CH))) for c in range(0, self.KS, CH)]
            def issue(ci):
                base = raw0 + (ci % DEPTH)*csz
                for j, kt in enumerate(chunks[ci]):
                    for p in range(8):
                        r = base + (j*8 + p)*nd
                        k.e(f"s_add_u32 s71, s{sbase}, {(kt*32 + p)*rowstride}")
                        if nd == 1: k.e(f"buffer_load_dword v{r}, v{voff}, s[{srdreg}:{srdreg+3}], s71 offen")
                        else: k.e(f"buffer_load_dwordx2 v[{r}:{r+1}], v{voff}, s[{srdreg}:{srdreg+3}], s71 offen")
            for ci in range(min(DEPTH - 1, len(chunks))): issue(ci)
            for ci in range(len(chunks)):
                if ci + DEPTH - 1 < len(chunks): issue(ci + DEPTH - 1)
                later = sum(len(chunks[c])*8 for c in range(ci + 1, min(len(chunks), ci + DEPTH)))
                k.e(f"s_waitcnt vmcnt({min(later, 63)})")
                base = raw0 + (ci % DEPTH)*csz
                for j, kt in enumerate(chunks[ci]):
                    for i in range(cpl):
                        t = tids[i]
                        if t is None: continue
                        dst = self.wreg[(t, kt)]
                        for d in range(4):
                            r0 = base + (j*8 + 2*d)*nd + i//2
                            r1 = base + (j*8 + 2*d + 1)*nd + i//2
                            sel = "s72" if i % 2 == 0 else "s73"
                            if dst < 256:
                                k.e(f"v_perm_b32 v{dst+d}, v{r1}, v{r0}, {sel}")
                            else:
                                k.e(f"v_perm_b32 v{28+d}, v{r1}, v{r0}, {sel}")
                        if dst >= 256:
                            for d in range(4):
                                k.e(f"v_accvgpr_write_b32 a{dst-256+d}, v{28+d}")

    def dma_stage(self, buf_sgpr_lds, src_sgpr):
        k = self.k
        nfr = self.RT * self.KS
        per = nfr // 4
        assert per * 4 == nfr
        for j in range(per):
            k.e(f"s_add_u32 m0, s{buf_sgpr_lds}, {j*1024}")
            k.e(f"s_add_u32 s71, s{src_sgpr}, {j*1024}")
            k.e(f"buffer_load_dwordx4 v20, s[60:63], s71 offen lds")
        return per

    def compute(self, ldsv, acc0, afr0):
        k = self.k
        seq = [(kt, rt) for kt in range(self.KS) for rt in range(self.RT)]
        RING = 4; AHEAD = 3
        def rd(j):
            kt, rt = seq[j]
            off = (rt*self.KS + kt)*1024
            b = afr0 + (j % RING)*4
            assert off < 65536
            k.e(f"ds_read_b128 v[{b}:{b+3}], v{ldsv} offset:{off}")
        for j in range(min(AHEAD, len(seq))): rd(j)
        for j, (kt, rt) in enumerate(seq):
            if j + AHEAD < len(seq): rd(j + AHEAD)
            outstanding = min(len(seq) - 1, j + AHEAD) - j
            k.e(f"s_waitcnt lgkmcnt({outstanding})")
            b = afr0 + (j % RING)*4
            for t in range(self.NT):
                a = acc0 + (rt*self.NT + t)*4
                w = self.wreg[(t, kt)]
                c = "0" if kt == 0 else f"v[{a}:{a+3}]"
                k.e(f"v_mfma_f32_16x16x32_bf16 v[{a}:{a+3}], v[{b}:{b+3}], {reg(w,4)}, {c}")
        k.nop(8)

    def common_prologue(self, nwg):
        k = self.k
        self.done = k.newlabel("done")
        k.e(f"s_cmp_ge_u32 s2, {nwg}")
        k.e(f"s_cbranch_scc1 {self.done}")
        k.e(f"s_load_dwordx2 s[8:9], s[0:1], {KA_WS}")
        k.e("v_lshrrev_b32 v1, 6, v0")
        k.e("v_and_b32 v2, 63, v0")
        k.e("v_and_b32 v3, 15, v0")
        k.e("v_bfe_u32 v4, v0, 4, 2")
        k.e("v_readfirstlane_b32 s74, v1")
        k.e("v_lshlrev_b32 v20, 4, v2")
        k.e("s_mov_b32 s72, 0x05040100")
        k.e("s_mov_b32 s73, 0x07060302")

    def main_loop(self, src0_sgpr, stage_src_bytes, epilogue, nstores):
        k = self.k
        nfr = self.RT * self.KS
        per = nfr // 4
        sb = self.stage_bytes
        k.e(f"s_mul_i32 s79, s74, {per*1024}")
        k.e(f"s_add_u32 s76, s{src0_sgpr}, s79")
        k.e("s_mov_b32 s77, s79")
        k.e(f"s_add_u32 s78, s79, {sb}")
        self.dma_stage(77, 76)
        k.e(f"s_add_u32 s76, s76, {stage_src_bytes}")
        k.e("s_mov_b32 s75, 0")
        k.e("s_waitcnt vmcnt(0)")
        loop = k.newlabel("loop");
        k.label(loop)
        for half in range(2):
            skip = k.newlabel("skip")
            k.e(f"s_waitcnt vmcnt({nstores})")
            k.e("s_barrier")
            k.e(f"s_cmp_ge_u32 s75, {self.nstage - 1}")
            k.e(f"s_cbranch_scc1 {skip}")
            self.dma_stage(78 if half == 0 else 77, 76)
            k.e(f"s_add_u32 s76, s76, {stage_src_bytes}")
            k.label(skip)
            self.compute(21 if half == 0 else 22, self.acc0, self.afr0)
            epilogue()
            k.e("s_add_u32 s75, s75, 1")
            if half == 0:
                pass
        k.e(f"s_cmp_lt_u32 s75, {self.nstage}")
        k.e(f"s_cbranch_scc1 {loop}")

def k_qkv(TS=2):
    g = WSG("qkv_kernel", 20, 2, [0,1,2,3], 64 // TS, 40960)
    k = g.k
    g.common_prologue(72*TS)
    k.e(f"s_load_dwordx2 s[10:11], s[0:1], {KA_WQ}")
    k.e(f"s_load_dwordx2 s[12:13], s[0:1], {KA_WK}")
    k.e(f"s_load_dwordx2 s[14:15], s[0:1], {KA_WV}")
    k.e("s_mov_b32 s16, s2")
    k.e("s_mov_b32 s17, 0")
    for i in range(1, TS):
        k.e(f"s_cmp_ge_u32 s2, {72*i}")
        k.e(f"s_cselect_b32 s16, s2, s16")
    k.e("s_mov_b32 s17, 0")
    for i in range(1, TS):
        k.e(f"s_cmp_ge_u32 s2, {72*i}")
        k.e("s_addc_u32 s17, s17, 0")
    k.e("s_mul_i32 s16, s17, 72")
    k.e("s_sub_u32 s16, s2, s16")
    k.e("s_mov_b32 s18, 0")
    k.e("s_cmp_ge_u32 s16, 24"); k.e("s_addc_u32 s18, s18, 0")
    k.e("s_cmp_ge_u32 s16, 48"); k.e("s_addc_u32 s18, s18, 0")
    k.e("s_mul_i32 s19, s18, 24")
    k.e("s_sub_u32 s19, s16, s19")
    k.e("s_lshl_b32 s19, s19, 8")
    k.e("s_lshl_b32 s3, s74, 6")
    k.e("s_add_u32 s19, s19, s3")
    k.e("s_waitcnt lgkmcnt(0)")
    srd(k, 60, 8, WS_SIZE)
    k.e("s_cmp_eq_u32 s18, 1")
    k.e("s_cselect_b32 s10, s12, s10"); k.e("s_cselect_b32 s11, s13, s11")
    k.e("s_cmp_eq_u32 s18, 2")
    k.e("s_cselect_b32 s10, s14, s10"); k.e("s_cselect_b32 s11, s15, s11")
    srd(k, 64, 10, D*H*E*2)
    k.e("s_mov_b32 s3, 98304")
    k.e("v_mul_lo_u32 v5, v4, s3")
    k.e("v_lshl_add_u32 v5, v3, 3, v5")
    k.e("s_lshl_b32 s70, s19, 1")
    g.load_weights([(64, 5, 12288, 4, [0,1,2,3], 70)])
    g.acc0 = 32; g.afr0 = 64
    k.e("v_mov_b32 v21, v20")
    k.e("v_add_u32 v22, 40960, v20")
    k.e(f"s_mul_i32 s20, s17, {(64//TS)*40960}")
    k.e(f"s_add_u32 s20, s20, {WS_H1F}")
    k.e(f"s_mul_i32 s21, s17, {(T//TS)}")
    k.e("s_mov_b32 s3, 49152")
    k.e("v_mul_lo_u32 v23, v4, s3")
    k.e("v_lshl_add_u32 v23, v3, 3, v23")
    k.e("v_add_u32 v23, s70, v23")
    k.e("s_mul_hi_u32 s22, s19, 0x1555556")
    k.e("s_mul_i32 s23, s22, 192")
    k.e("s_sub_u32 s23, s19, s23")
    k.e("v_lshrrev_b32 v24, 3, v3")
    k.e("s_lshr_b32 s3, s23, 5")
    k.e("v_add_u32 v24, s3, v24")
    k.e("v_lshlrev_b32 v24, 10, v24")
    k.e("v_bfe_u32 v25, v3, 1, 2")
    k.e("v_lshl_add_u32 v24, v25, 8, v24")
    k.e("v_lshl_add_u32 v24, v4, 6, v24")
    k.e("v_and_b32 v25, 1, v3")
    k.e("v_lshl_add_u32 v24, v25, 3, v24")
    k.e(f"s_mul_i32 s24, s22, {128*6144}")
    k.e(f"s_add_u32 s24, s24, {WS_VF}")
    k.e(f"s_mov_b32 s25, {WS_Q}")
    k.e("s_cmp_eq_u32 s18, 1")
    k.e(f"s_cselect_b32 s25, {WS_K}, s25")
    def epi():
        isv = k.newlabel("isv"); end = k.newlabel("epiend")
        for rt in range(2):
            for r in range(4):
                a = g.acc0 + rt*16
                d = 80 + (rt*4 + r)*2
                k.e(f"v_cvt_pk_bf16_f32 v{d}, v{a+r}, v{a+4+r}")
                k.e(f"v_cvt_pk_bf16_f32 v{d+1}, v{a+8+r}, v{a+12+r}")
        k.e("s_cmp_eq_u32 s18, 2")
        k.e(f"s_cbranch_scc1 {isv}")
        k.e("s_lshl_b32 s3, s75, 5")
        k.e("s_add_u32 s3, s3, s21")
        k.e("s_mul_i32 s3, s3, 12288")
        k.e("s_add_u32 s3, s3, s25")
        for rt in range(2):
            for r in range(4):
                d = 80 + (rt*4 + r)*2
                k.e(f"s_add_u32 s71, s3, {(rt*16 + r)*12288}")
                k.e(f"buffer_store_dwordx2 v[{d}:{d+1}], v23, s[60:63], s71 offen")
        k.e(f"s_branch {end}")
        k.label(isv)
        k.e("s_lshr_b32 s3, s21, 4")
        k.e("s_lshl_b32 s71, s75, 1")
        k.e("s_add_u32 s3, s3, s71")
        k.e("s_mul_i32 s3, s3, 6144")
        k.e("s_add_u32 s3, s3, s24")
        for rt in range(2):
            for r in range(4):
                d = 80 + (rt*4 + r)*2
                k.e(f"s_add_u32 s71, s3, {rt*6144}")
                k.e(f"buffer_store_dwordx2 v[{d}:{d+1}], v24, s[60:63], s71 offen offset:{r*16}")
        k.label(end)
    g.main_loop(20, 40960, epi, 8)
    k.label(g.done)
    k.e("s_endpgm")
    return kernel_text(k, 512, 100, 256), f"; @launch kernel=qkv_kernel grid=({72*TS},1,1) block=(256,1,1) lds=81920"

def k_vo(TS=4):
    g = WSG("vo_kernel", 6, 2, list(range(10)), 64 // TS, 12288)
    k = g.k
    g.common_prologue(32*TS)
    k.e(f"s_load_dwordx2 s[10:11], s[0:1], {KA_WO}")
    k.e("s_and_b32 s16, s2, 31")
    k.e("s_lshr_b32 s17, s2, 5")
    k.e("s_waitcnt lgkmcnt(0)")
    srd(k, 60, 8, WS_SIZE)
    srd(k, 64, 10, H*E*D*2)
    k.e("s_movk_i32 s3, 10240")
    k.e("v_mul_lo_u32 v5, v4, s3")
    k.e("v_lshl_add_u32 v6, v3, 2, v5")
    k.e("v_lshl_add_u32 v5, v3, 3, v5")
    k.e("s_mul_i32 s19, s74, 160")
    k.e("s_mul_i32 s3, s16, 245760")
    k.e("s_lshl_b32 s26, s19, 1")
    k.e("s_add_u32 s26, s26, s3")
    k.e("s_add_u32 s27, s26, 128")
    k.e("s_add_u32 s28, s26, 256")
    g.load_weights([(64, 5, 1280, 4, [0,1,2,3], 26), (64, 5, 1280, 4, [4,5,6,7], 27), (64, 6, 1280, 2, [8,9], 28)])
    g.acc0 = 32; g.afr0 = 112
    k.e("v_mov_b32 v21, v20")
    k.e("v_add_u32 v22, 12288, v20")
    k.e(f"s_mul_i32 s20, s16, 128")
    k.e(f"s_mul_i32 s3, s17, {128//TS}")
    k.e("s_add_u32 s20, s20, s3")
    k.e("s_mul_i32 s20, s20, 6144")
    k.e(f"s_add_u32 s20, s20, {WS_VF}")
    k.e("v_lshlrev_b32 v23, 8, v3")
    k.e("v_lshl_add_u32 v23, v4, 4, v23")
    k.e("v_lshlrev_b32 v24, 7, v3")
    k.e("v_lshl_add_u32 v24, v4, 4, v24")
    k.e(f"s_mul_i32 s21, s17, {64//TS}")
    def epi():
        k.e("s_add_u32 s3, s21, s75")
        k.e("s_lshl_b32 s3, s3, 5")
        k.e("s_add_u32 s3, s3, s16")
        k.e("s_mul_i32 s3, s3, 640")
        k.e("s_add_u32 s3, s3, s19")
        k.e("s_lshl_b32 s3, s3, 6")
        k.e(f"s_add_u32 s3, s3, {WS_VOX}")
        for t in range(10):
            a0 = g.acc0 + t*4; a1 = g.acc0 + (10 + t)*4
            d = 128 + (t % 4)*4
            k.e(f"v_cvt_pk_bf16_f32 v{d}, v{a0}, v{a0+1}")
            k.e(f"v_cvt_pk_bf16_f32 v{d+1}, v{a0+2}, v{a0+3}")
            k.e(f"v_cvt_pk_bf16_f32 v{d+2}, v{a1}, v{a1+1}")
            k.e(f"v_cvt_pk_bf16_f32 v{d+3}, v{a1+2}, v{a1+3}")
            if t < 8:
                off = (t//4)*64*64 + (t%4)*64; vo = 23
            else:
                off = 128*64 + (t-8)*64; vo = 24
            k.e(f"s_add_u32 s71, s3, {off}")
            k.e(f"buffer_store_dwordx4 v[{d}:{d+3}], v{vo}, s[60:63], s71 offen")
        k.e("s_nop 1")
    g.main_loop(20, 12288, epi, 10)
    k.label(g.done)
    k.e("s_endpgm")
    return kernel_text(k, 512, 100, 256), f"; @launch kernel=vo_kernel grid=({32*TS},1,1) block=(256,1,1) lds=24576"

def all_kernels():
    ks = [k_mod(), k_ln("ln1_kernel", True), k_qkv(), k_vo()]
    try:
        import kernels3
        ks += kernels3.more_kernels()
    except ImportError:
        pass
    return ks
```

```python
from asmlib import *
from gen import *
import struct
def fbits(f): return struct.unpack('<I', struct.pack('<f', f))[0]

SPIN_LIMIT = 1 << 16
NREG_FR = 87
NLDS_FR = 33
LDS_MEMS = 4*NLDS_FR*1024
LDS_EX = LDS_MEMS + 8*1296
LDS_TOTAL = LDS_EX + 16*400

def wloc(f):
    if f < 64: return ('r', 256 + 4*f)
    if f < NREG_FR: return ('r', 164 + 4*(f - 64))
    return ('l', f - NREG_FR)

def xred(k, v, tmp, op):
    k.e(f"v_mov_b32 v{tmp}, v{v}")
    k.e("s_nop 1")
    k.e(f"v_permlane16_swap_b32 v{v}, v{tmp}")
    k.e("s_nop 1")
    k.e(f"{op} v{v}, v{v}, v{tmp}")
    k.e(f"v_mov_b32 v{tmp}, v{v}")
    k.e("s_nop 1")
    k.e(f"v_permlane32_swap_b32 v{v}, v{tmp}")
    k.e("s_nop 1")
    k.e(f"{op} v{v}, v{v}, v{tmp}")

def put_frag(k, f, src4):
    kind, r = wloc(f)
    if kind == 'l':
        k.e(f"ds_write_b128 v19, v[{src4}:{src4+3}] offset:{r*1024}")
    elif r >= 256:
        for d in range(4): k.e(f"v_accvgpr_write_b32 a{r-256+d}, v{src4+d}")
    else:
        for d in range(4): k.e(f"v_mov_b32 v{r+d}, v{src4+d}")

def load_block(k, srdreg, voff, rowstride, cpl, sbase, KS, dests, raw0=32):
    nd = cpl // 2
    CH = 4 if nd == 1 else 2
    DEPTH = 3
    csz = CH*8*nd
    chunks = [list(range(c, min(KS, c + CH))) for c in range(0, KS, CH)]
    def issue(ci):
        base = raw0 + (ci % DEPTH)*csz
        for j, kt in enumerate(chunks[ci]):
            for p in range(8):
                r = base + (j*8 + p)*nd
                k.e(f"s_add_u32 s71, s{sbase}, {(kt*32 + p)*rowstride}")
                if nd == 1: k.e(f"buffer_load_dword v{r}, v{voff}, s[{srdreg}:{srdreg+3}], s71 offen")
                else: k.e(f"buffer_load_dwordx2 v[{r}:{r+1}], v{voff}, s[{srdreg}:{srdreg+3}], s71 offen")
    for ci in range(min(DEPTH - 1, len(chunks))): issue(ci)
    for ci in range(len(chunks)):
        if ci + DEPTH - 1 < len(chunks): issue(ci + DEPTH - 1)
        later = sum(len(chunks[c])*8 for c in range(ci + 1, min(len(chunks), ci + DEPTH)))
        k.e(f"s_waitcnt vmcnt({min(later, 63)})")
        base = raw0 + (ci % DEPTH)*csz
        for j, kt in enumerate(chunks[ci]):
            for i in range(cpl):
                if dests[i] is None: continue
                t4 = 132 + 4*((j*cpl + i) % 4)
                for d in range(4):
                    r0 = base + (j*8 + 2*d)*nd + i//2
                    r1 = base + (j*8 + 2*d + 1)*nd + i//2
                    sel = "s72" if i % 2 == 0 else "s73"
                    k.e(f"v_perm_b32 v{t4+d}, v{r1}, v{r0}, {sel}")
                put_frag(k, dests[i](kt), t4)
        k.e("s_waitcnt lgkmcnt(0)")

import os
STAMP = bool(os.environ.get("STAMP"))
WS_STAMP = WS_END
def stamp(k, idx):
    if not STAMP: return
    sk = k.newlabel("st")
    k.e("s_cmp_lg_u32 s74, 0")
    k.e(f"s_cbranch_scc1 {sk}")
    k.e("s_memrealtime s[94:95]")
    k.e("s_lshl_b32 s92, s2, 6")
    k.e("s_add_u32 s92, s92, s29")
    k.e("s_lshl_b32 s92, s92, 6")
    k.e(f"s_add_u32 s92, s92, {WS_STAMP + idx*8}")
    k.e("s_waitcnt lgkmcnt(0)")
    k.e("v_mov_b32 v160, s94")
    k.e("v_mov_b32 v161, s95")
    k.e("v_mov_b32 v162, 0")
    k.e("buffer_store_dwordx2 v[160:161], v162, s[60:63], s92 offen")
    k.label(sk)

def poll_mem(k, tag):
    loop = k.newlabel("pm"); ok = k.newlabel("pmok"); pp = k.newlabel("ppm"); ppo = k.newlabel("ppmo")
    k.e("s_mov_b32 s31, 0")
    k.label(pp)
    k.e("buffer_load_dword v136, v9, s[60:63], s30 offen sc1")
    k.e("s_add_u32 s31, s31, 1")
    k.e(f"s_cmp_ge_u32 s31, {SPIN_LIMIT*4}")
    k.e(f"s_cbranch_scc1 {ppo}")
    k.e("s_waitcnt vmcnt(0)")
    k.e("v_cmp_eq_u32 vcc, -1, v136")
    k.e(f"s_cbranch_vccnz {pp}")
    k.label(ppo)
    k.e("s_mov_b32 s31, 0")
    k.label(loop)
    for j in range(3):
        k.e(f"buffer_load_dwordx4 v[{136+4*j}:{139+4*j}], v{10+j}, s[60:63], s30 offen sc1")
    k.e("s_waitcnt vmcnt(0)")
    k.e("v_max3_u32 v148, v136, v137, v138")
    k.e("v_max3_u32 v149, v139, v140, v141")
    k.e("v_max3_u32 v150, v142, v143, v144")
    k.e("v_max3_u32 v151, v145, v146, v147")
    k.e("v_max3_u32 v148, v148, v149, v150")
    k.e("v_max_u32 v148, v148, v151")
    k.e("v_cmp_eq_u32 vcc, -1, v148")
    k.e(f"s_cbranch_vccz {ok}")
    k.e("s_add_u32 s31, s31, 1")
    k.e(f"s_cmp_lt_u32 s31, {SPIN_LIMIT}")
    k.e(f"s_cbranch_scc1 {loop}")
    k.label(ok)
    for j in range(3):
        k.e(f"ds_write_b128 v{13+j}, v[{136+4*j}:{139+4*j}]")
    k.e("s_waitcnt lgkmcnt(0)")
    k.e("s_barrier")

def proj(k, nt, fr, acc0, KS=20):
    MR, WR = 56, 72
    reads = []
    for kt in range(KS):
        reads.append(('m', kt, None))
        for t in range(nt):
            if wloc(fr(kt, t))[0] == 'l': reads.append(('w', kt, t))
    mslot = {}; wslot = {}
    mi = wi = 0
    for rd in reads:
        if rd[0] == 'm': mslot[rd[1]] = MR + 4*(mi % 4); mi += 1
        else: wslot[(rd[1], rd[2])] = WR + 4*(wi % 4); wi += 1
    issued = 0
    def issue(n):
        nonlocal issued
        while issued < min(n, len(reads)):
            kind, kt, t = reads[issued]
            if kind == 'm':
                b = mslot[kt]; k.e(f"ds_read_b128 v[{b}:{b+3}], v16 offset:{kt*64}")
            else:
                b = wslot[(kt, t)]; k.e(f"ds_read_b128 v[{b}:{b+3}], v18 offset:{wloc(fr(kt,t))[1]*1024}")
            issued += 1
    pos = 0
    AHEAD = 3
    issue(AHEAD)
    for kt in range(KS):
        assert reads[pos] == ('m', kt, None)
        issue(pos + 1 + AHEAD - 1)
        k.e(f"s_waitcnt lgkmcnt({issued - pos - 1})")
        pos += 1
        for t in range(nt):
            kind, r = wloc(fr(kt, t))
            if kind == 'l':
                assert reads[pos] == ('w', kt, t)
                issue(pos + AHEAD)
                k.e(f"s_waitcnt lgkmcnt({issued - pos - 1})")
                pos += 1
                wop = f"v[{wslot[(kt,t)]}:{wslot[(kt,t)]+3}]"
            else:
                wop = reg(r, 4)
            a = acc0 + 4*t
            c = "0" if kt == 0 else f"v[{a}:{a+3}]"
            mb = mslot[kt]
            k.e(f"v_mfma_f32_16x16x32_bf16 v[{a}:{a+3}], {wop}, v[{mb}:{mb+3}], {c}")
    k.nop(8)

def k_rec():
    k = K("rec_kernel")
    done = k.newlabel("done"); LB = k.newlabel("roleB"); LY = k.newlabel("roleY")
    k.e("s_cmp_ge_u32 s2, 104")
    k.e(f"s_cbranch_scc1 {done}")
    k.e(f"s_load_dwordx2 s[8:9], s[0:1], {KA_WS}")
    k.e(f"s_load_dwordx4 s[12:15], s[0:1], {KA_WQ}")
    k.e(f"s_load_dwordx4 s[16:19], s[0:1], {KA_WV}")
    k.e("v_lshrrev_b32 v1, 6, v0")
    k.e("v_and_b32 v2, 63, v0")
    k.e("v_and_b32 v3, 15, v0")
    k.e("v_bfe_u32 v4, v0, 4, 2")
    k.e("v_and_b32 v5, 7, v0")
    k.e("v_readfirstlane_b32 s74, v1")
    k.e("s_mov_b32 s72, 0x05040100")
    k.e("s_mov_b32 s73, 0x07060302")
    k.e("v_cmp_gt_u32 s[80:81], 8, v3")
    k.e("v_cmp_gt_u32 s[82:83], 32, v2")
    k.e("s_nop 1")
    k.e("s_and_b64 s[82:83], s[82:83], s[80:81]")
    k.e("v_cmp_le_u32 s[84:85], 32, v2")
    k.e("s_waitcnt lgkmcnt(0)")
    srd(k, 60, 8, WS_SIZE)
    k.e("s_cmp_ge_u32 s2, 64")
    k.e(f"s_cbranch_scc1 {LY}")
    k.e("s_and_b32 s20, s2, 31")
    for j in range(3):
        k.e(f"v_add_u32 v6, {j*64}, v2")
        k.e("v_min_u32 v6, 159, v6")
        k.e(f"v_lshlrev_b32 v{10+j}, 4, v6")
        k.e("v_bfe_u32 v7, v6, 1, 3")
        k.e("s_movk_i32 s3, 1296")
        k.e("v_mul_lo_u32 v7, v7, s3")
        k.e("v_lshrrev_b32 v8, 4, v6")
        k.e("s_mul_i32 s3, s74, 10")
        k.e("v_add_u32 v8, s3, v8")
        k.e("v_lshl_add_u32 v7, v8, 5, v7")
        k.e("v_and_b32 v8, 1, v6")
        k.e("v_lshl_add_u32 v7, v8, 4, v7")
        k.e(f"v_add_u32 v{13+j}, {LDS_MEMS}, v7")
    k.e("s_movk_i32 s3, 1296")
    k.e("v_mul_lo_u32 v16, v5, s3")
    k.e("v_lshl_add_u32 v16, v4, 4, v16")
    k.e(f"v_add_u32 v16, {LDS_MEMS}, v16")
    k.e(f"s_mul_i32 s3, s74, {NLDS_FR*1024}")
    k.e("v_lshlrev_b32 v18, 4, v2")
    k.e("v_add_u32 v18, s3, v18")
    k.e("v_mov_b32 v19, v18")
    k.e("s_movk_i32 s3, 400")
    k.e("v_mul_lo_u32 v17, v5, s3")
    k.e(f"v_add_u32 v17, {LDS_EX}, v17")
    k.e(f"s_mul_i32 s30, s74, 2560")
    k.e(f"s_add_u32 s30, s30, {WS_MEM}")
    k.e("s_mov_b32 s29, 0")
    k.e("s_cmp_ge_u32 s2, 32")
    k.e(f"s_cbranch_scc1 {LB}")

    k.e("s_cmp_ge_u32 s74, 2")
    k.e("s_cselect_b32 s12, s14, s12"); k.e("s_cselect_b32 s13, s15, s13")
    srd(k, 64, 12, D*H*E*2)
    k.e("s_and_b32 s3, s74, 1")
    k.e("s_mul_i32 s3, s3, 192")
    k.e("s_mul_i32 s21, s20, 384")
    k.e("s_add_u32 s21, s21, s3")
    k.e("s_mov_b32 s3, 98304")
    k.e("v_mul_lo_u32 v6, v4, s3")
    k.e("v_lshl_add_u32 v6, v3, 2, v6")
    for b in range(3):
        k.e(f"s_add_u32 s22, s21, {b*64}")
        load_block(k, 64, 6, 12288, 2, 22, 20, [lambda kt, b=b: kt*6 + 2*b, lambda kt, b=b: kt*6 + 2*b + 1])
    k.e("s_lshr_b32 s3, s74, 1")
    k.e("s_mul_i32 s3, s3, 3200")
    k.e("s_and_b32 s22, s74, 1")
    k.e("s_mul_i32 s22, s22, 192")
    k.e("s_add_u32 s3, s3, s22")
    k.e("v_lshl_add_u32 v20, v4, 4, v17")
    k.e("v_add_u32 v20, s3, v20")
    k.e("v_lshl_add_u32 v21, v4, 4, v17")
    k.e("s_movk_i32 s3, 12288")
    k.e("v_mul_lo_u32 v22, v3, s3")
    k.e("v_lshl_add_u32 v22, v4, 4, v22")
    k.e("s_mul_i32 s23, s20, 384")
    k.e(f"s_add_u32 s23, s23, {WS_K}")
    k.e("v_mul_u32_u24 v23, 80, v3")
    k.e("v_lshl_add_u32 v24, v4, 4, v23")
    k.e("v_add_u32 v24, 16, v24")
    k.e("v_lshl_add_u32 v23, v4, 3, v23")
    k.e("s_mul_i32 s24, s20, 640")
    k.e(f"s_add_u32 s24, s24, {WS_PB}")
    k.e("v_mul_u32_u24 v25, 384, v3")
    k.e("v_lshl_add_u32 v25, v4, 4, v25")
    k.e("s_mul_i32 s25, s20, 3072")
    k.e(f"s_add_u32 s25, s25, {WS_KM}")
    k.e("v_mov_b32 v26, 0xff800000")
    k.e("s_barrier")
    la = k.newlabel("Aloop"); lfin = k.newlabel("Afin"); lnext = k.newlabel("Anext")
    k.label(la)
    k.e("s_cmp_lg_u32 s74, 0")
    nokx = k.newlabel("nokx")
    k.e(f"s_cbranch_scc1 {nokx}")
    for u in range(2):
        k.e(f"s_add_u32 s71, s23, {u*16*12288}")
        for t in range(6):
            b = 88 + (u*6 + t)*4
            k.e(f"buffer_load_dwordx4 v[{b}:{b+3}], v22, s[60:63], s71 offen offset:{t*64}")
    k.label(nokx)
    stamp(k, 0)
    poll_mem(k, "A")
    stamp(k, 1)
    proj(k, 6, lambda kt, t: kt*6 + t, 32)
    stamp(k, 2)
    for b in range(3):
        a0 = 32 + 8*b; a1 = a0 + 4
        for r in range(4):
            k.e(f"v_cvt_pk_bf16_f32 v{148+4*b+r}, v{a0+r}, v{a1+r}")
        k.e(f"ds_write_b128 v20, v[{148+4*b}:{151+4*b}] offset:{b*64}")
    k.e("s_waitcnt lgkmcnt(0)")
    k.e("s_barrier")
    k.e("s_cmp_lg_u32 s74, 0")
    k.e(f"s_cbranch_scc1 {lnext}")
    for t in range(6):
        k.e(f"ds_read_b128 v[{32+4*t}:{35+4*t}], v21 offset:{t*64}")
        k.e(f"ds_read_b128 v[{56+4*t}:{59+4*t}], v21 offset:{3200 + t*64}")
    for t in range(6):
        k.e(f"s_waitcnt lgkmcnt({10 - 2*t})")
        for T_ in range(3):
            a = 136 + 4*T_
            kop = f"v[{56+4*t}:{59+4*t}]" if T_ == 0 else f"v[{88+((T_-1)*6+t)*4}:{91+((T_-1)*6+t)*4}]"
            c = "0" if t == 0 else f"v[{a}:{a+3}]"
            k.e(f"v_mfma_f32_16x16x32_bf16 v[{a}:{a+3}], {kop}, v[{32+4*t}:{35+4*t}], {c}")
    k.nop(8)
    sc = fbits(192 ** -0.5)
    for i in range(0, 12, 2):
        a = 136 + i
        k.e(f"v_cvt_pk_bf16_f32 v148, v{a}, v{a+1}")
        k.e(f"v_lshlrev_b32 v{a}, 16, v148")
        k.e(f"v_and_b32 v{a+1}, 0xffff0000, v148")
        k.e(f"v_mul_f32 v{a}, 0x{sc:08x}, v{a}")
        k.e(f"v_mul_f32 v{a+1}, 0x{sc:08x}, v{a+1}")
        k.e(f"v_cvt_pk_bf16_f32 v148, v{a}, v{a+1}")
        k.e(f"v_lshlrev_b32 v{a}, 16, v148")
        k.e(f"v_and_b32 v{a+1}, 0xffff0000, v148")
    for r in range(4):
        k.e(f"v_cndmask_b32 v{136+r}, v{136+r}, v26, s[84:85]")
    k.e("v_max3_f32 v148, v136, v137, v138")
    k.e("v_max3_f32 v149, v139, v140, v141")
    k.e("v_max3_f32 v150, v142, v143, v144")
    k.e("v_max3_f32 v151, v145, v146, v147")
    k.e("v_max3_f32 v148, v148, v149, v150")
    k.e("v_max_f32 v148, v148, v151")
    xred(k, 148, 149, "v_max_f32")
    k.e("v_mul_f32 v148, 0xbfb8aa3b, v148")
    k.e("s_mov_b32 s3, 0x3fb8aa3b")
    for i in range(12):
        k.e(f"v_fma_f32 v{136+i}, v{136+i}, s3, v148")
    for i in range(12):
        k.e(f"v_exp_f32 v{136+i}, v{136+i}")
    k.e("s_nop 0")
    k.e("v_add_f32 v149, v136, v137")
    for i in range(2, 12):
        k.e(f"v_add_f32 v149, v149, v{136+i}")
    xred(k, 149, 150, "v_add_f32")
    k.e("v_rcp_f32 v149, v149")
    k.e("s_nop 0")
    for i in range(12):
        k.e(f"v_mul_f32 v{136+i}, v{136+i}, v149")
    for i in range(6):
        k.e(f"v_cvt_pk_bf16_f32 v{152+i}, v{136+2*i}, v{137+2*i}")
    for i in range(6):
        k.e(f"v_min_u32 v{152+i}, 0xfffffffe, v{152+i}")
    k.e("s_mov_b64 exec, s[80:81]")
    k.e("buffer_store_dwordx4 v[154:157], v24, s[60:63], s24 offen sc1")
    k.e("s_mov_b64 exec, s[82:83]")
    k.e("buffer_store_dwordx2 v[152:153], v23, s[60:63], s24 offen sc1")
    k.e("s_mov_b64 exec, s[80:81]")
    for t in range(6):
        k.e(f"buffer_store_dwordx4 v[{56+4*t}:{59+4*t}], v25, s[60:63], s25 offen offset:{t*64}")
    k.e("s_mov_b64 exec, -1")
    stamp(k, 3)
    k.label(lnext)
    k.e("s_add_u32 s29, s29, 1")
    k.e("s_add_u32 s30, s30, 10240")
    k.e(f"s_add_u32 s23, s23, {32*12288}")
    k.e(f"s_add_u32 s24, s24, {32*640}")
    k.e(f"s_add_u32 s25, s25, {32*3072}")
    k.e(f"s_cmp_lt_u32 s29, {NS}")
    k.e(f"s_cbranch_scc1 {la}")
    k.e(f"s_branch {done}")

    k.label(LB)
    srd(k, 64, 16, D*H*E*2)
    srd(k, 88, 18, H*E*D*2)
    k.e("s_mov_b32 s3, 98304")
    k.e("v_mul_lo_u32 v6, v4, s3")
    k.e("v_lshl_add_u32 v6, v3, 2, v6")
    k.e("s_mul_i32 s26, s74, 3")
    k.e("s_lshr_b32 s26, s26, 1")
    k.e("s_mul_i32 s21, s20, 384")
    k.e("s_lshl_b32 s3, s26, 6")
    k.e("s_add_u32 s21, s21, s3")
    k.e("s_add_u32 s22, s21, 64")
    odd = k.newlabel("odd"); wl2 = k.newlabel("wl2")
    fv = lambda j: (lambda kt: kt*3 + j)
    k.e("s_bitcmp1_b32 s74, 0")
    k.e(f"s_cbranch_scc1 {odd}")
    load_block(k, 64, 6, 12288, 2, 21, 20, [fv(0), fv(1)])
    load_block(k, 64, 6, 12288, 2, 22, 20, [fv(2), None])
    k.e("s_lshl_b32 s40, s26, 6"); k.e("s_add_u32 s41, s40, 2"); k.e("s_add_u32 s42, s40, 64")
    k.e(f"s_branch {wl2}")
    k.label(odd)
    load_block(k, 64, 6, 12288, 2, 21, 20, [None, fv(0)])
    load_block(k, 64, 6, 12288, 2, 22, 20, [fv(1), fv(2)])
    k.e("s_lshl_b32 s40, s26, 6"); k.e("s_add_u32 s40, s40, 2"); k.e("s_add_u32 s41, s40, 62"); k.e("s_add_u32 s42, s40, 64")
    k.label(wl2)
    fo = lambda t: (lambda kt: 60 + kt*10 + t)
    k.e("s_movk_i32 s3, 10240")
    k.e("v_mul_lo_u32 v6, v4, s3")
    k.e("v_lshl_add_u32 v7, v3, 2, v6")
    k.e("v_lshl_add_u32 v6, v3, 3, v6")
    k.e("s_mul_i32 s27, s74, 160")
    k.e("s_mul_i32 s3, s20, 245760")
    k.e("s_lshl_b32 s21, s27, 1")
    k.e("s_add_u32 s21, s21, s3")
    k.e("s_add_u32 s22, s21, 128")
    k.e("s_add_u32 s23, s21, 256")
    load_block(k, 88, 6, 1280, 4, 21, 6, [fo(0), fo(1), fo(2), fo(3)])
    load_block(k, 88, 6, 1280, 4, 22, 6, [fo(4), fo(5), fo(6), fo(7)])
    load_block(k, 88, 7, 1280, 2, 23, 6, [fo(8), fo(9)])
    k.e("v_lshl_add_u32 v21, v4, 4, v17")
    for j in range(3):
        k.e(f"v_add_u32 v{22+j}, s{40+j}, v21")
    k.e("v_lshlrev_b32 v25, 6, v3")
    k.e("v_lshl_add_u32 v25, v4, 3, v25")
    k.e("v_lshlrev_b32 v26, 5, v3")
    k.e("v_lshl_add_u32 v26, v4, 3, v26")
    k.e("s_mul_i32 s24, s20, 640")
    k.e("s_add_u32 s24, s24, s27")
    k.e("s_lshl_b32 s24, s24, 4")
    k.e(f"s_add_u32 s24, s24, {WS_VOM}")
    k.e("s_barrier")
    lb = k.newlabel("Bloop")
    k.label(lb)
    stamp(k, 0)
    poll_mem(k, "B")
    stamp(k, 1)
    proj(k, 3, lambda kt, t: kt*3 + t, 32)
    stamp(k, 2)
    for j in range(3):
        for r in range(4):
            k.e(f"v_cvt_pk_bf16_f32 v{148+r}, v{32+4*j+r}, v{32+4*j+r}")
        for r in range(4):
            k.e(f"ds_write_b16 v{22+j}, v{148+r} offset:{4*r}")
    k.e("s_waitcnt lgkmcnt(0)")
    k.e("s_barrier")
    for t in range(6):
        k.e(f"ds_read_b128 v[{88+4*t}:{91+4*t}], v21 offset:{t*64}")
    wi = 0
    pend = [(kt, t) for kt in range(6) for t in range(10) if wloc(60 + kt*10 + t)[0] == 'l']
    slot = {p: 72 + 4*(i % 4) for i, p in enumerate(pend)}
    issued = 0
    k.e("s_waitcnt lgkmcnt(0)")
    def issue(n):
        nonlocal issued
        while issued < min(n, len(pend)):
            p = pend[issued]; b = slot[p]
            k.e(f"ds_read_b128 v[{b}:{b+3}], v18 offset:{wloc(60 + p[0]*10 + p[1])[1]*1024}")
            issued += 1
    issue(3)
    pos = 0
    for kt in range(6):
        for t in range(10):
            kind, r = wloc(60 + kt*10 + t)
            if kind == 'l':
                issue(pos + 3)
                k.e(f"s_waitcnt lgkmcnt({issued - pos - 1})")
                wop = f"v[{slot[(kt,t)]}:{slot[(kt,t)]+3}]"
                pos += 1
            else:
                wop = reg(r, 4)
            a = 112 + 4*t
            c = "0" if kt == 0 else f"v[{a}:{a+3}]"
            k.e(f"v_mfma_f32_16x16x32_bf16 v[{a}:{a+3}], v[{88+4*kt}:{91+4*kt}], {wop}, {c}")
    k.nop(8)
    k.e("s_mov_b32 exec_lo, -1")
    k.e("s_mov_b32 exec_hi, 0")
    for t in range(10):
        a = 112 + 4*t
        d = 152 + 2*(t % 4)
        k.e(f"v_cvt_pk_bf16_f32 v{d}, v{a}, v{a+1}")
        k.e(f"v_cvt_pk_bf16_f32 v{d+1}, v{a+2}, v{a+3}")
        k.e(f"v_min_u32 v{d}, 0xfffffffe, v{d}")
        k.e(f"v_min_u32 v{d+1}, 0xfffffffe, v{d+1}")
        if t < 8: off = (t//4)*1024 + (t%4)*16; vo = 25
        else: off = 2048 + (t-8)*16; vo = 26
        k.e(f"buffer_store_dwordx2 v[{d}:{d+1}], v{vo}, s[60:63], s24 offen offset:{off} sc1")
    k.e("s_mov_b64 exec, -1")
    stamp(k, 3)
    k.e("s_add_u32 s29, s29, 1")
    k.e("s_add_u32 s30, s30, 10240")
    k.e(f"s_add_u32 s24, s24, {32*640*16}")
    k.e(f"s_cmp_lt_u32 s29, {NS}")
    k.e(f"s_cbranch_scc1 {lb}")
    k.e(f"s_branch {done}")

    k.label(LY)
    k.e("s_sub_u32 s20, s2, 64")
    k.e("v_mul_u32_u24 v6, 80, v5")
    k.e("s_mul_i32 s3, s74, 5120")
    k.e("v_add_u32 v6, s3, v6")
    k.e("v_lshl_add_u32 v7, v4, 4, v6")
    k.e("v_add_u32 v7, 16, v7")
    k.e("v_mul_u32_u24 v8, 640, v4")
    k.e("v_add_u32 v6, v8, v6")
    k.e("s_lshl_b32 s21, s20, 4")
    k.e("s_add_u32 s21, s21, s3")
    k.e("v_add_u32 v9, s21, v3")
    k.e("v_add_u32 v10, v8, v9")
    k.e("v_lshlrev_b32 v10, 4, v10")
    k.e("v_lshlrev_b32 v9, 6, v9")
    k.e("v_lshl_add_u32 v9, v4, 4, v9")
    k.e(f"s_mov_b32 s22, {WS_PB}")
    k.e(f"s_mov_b32 s23, {WS_VOM}")
    k.e(f"s_mov_b32 s24, {WS_VOX}")
    k.e("v_lshlrev_b32 v11, 4, v0")
    k.e("v_lshlrev_b32 v12, 4, v2")
    k.e("v_lshlrev_b32 v13, 5, v3")
    k.e("v_lshl_add_u32 v13, v4, 3, v13")
    k.e("s_lshl_b32 s25, s20, 8")
    k.e(f"s_add_u32 s25, s25, {WS_MEM + 10240}")
    k.e("s_mov_b32 s29, 0")
    ly = k.newlabel("Yloop"); yp = k.newlabel("Ypoll"); yok = k.newlabel("Yok"); ynext = k.newlabel("Ynext")
    k.label(ly)
    for t in range(2, 10):
        k.e(f"s_add_u32 s71, s24, {(t-2)*640*64}")
        k.e(f"buffer_load_dwordx4 v[{40+4*t}:{43+4*t}], v9, s[60:63], s71 offen")
    stamp(k, 0)
    k.e("s_mov_b32 s31, 0")
    k.label(yp)
    for t in range(2):
        k.e(f"s_add_u32 s71, s23, {t*4*640*16}")
        k.e(f"buffer_load_dwordx4 v[{40+4*t}:{43+4*t}], v10, s[60:63], s71 offen sc1")
        k.e(f"buffer_load_dwordx4 v[{80+4*t}:{83+4*t}], v6, s[60:63], s22 offen offset:{t*2560} sc1")
    for t in range(2, 10):
        k.e(f"s_add_u32 s71, s22, {(t-2)*640}")
        k.e(f"buffer_load_dwordx4 v[{80+4*t}:{83+4*t}], v7, s[60:63], s71 offen sc1")
    k.e("s_waitcnt vmcnt(0)")
    regs = list(range(40, 48)) + list(range(80, 120))
    k.e(f"v_max3_u32 v120, v{regs[0]}, v{regs[1]}, v{regs[2]}")
    i = 3
    while i < len(regs):
        if i + 1 < len(regs):
            k.e(f"v_max3_u32 v120, v120, v{regs[i]}, v{regs[i+1]}"); i += 2
        else:
            k.e(f"v_max_u32 v120, v120, v{regs[i]}"); i += 1
    k.e("v_cmp_eq_u32 vcc, -1, v120")
    k.e(f"s_cbranch_vccz {yok}")
    k.e("s_add_u32 s31, s31, 1")
    k.e(f"s_cmp_lt_u32 s31, {SPIN_LIMIT}")
    k.e(f"s_cbranch_scc1 {yp}")
    k.label(yok)
    stamp(k, 1)
    for t in range(10):
        c = "0" if t == 0 else "v[124:127]"
        k.e(f"v_mfma_f32_16x16x32_bf16 v[124:127], v[{40+4*t}:{43+4*t}], v[{80+4*t}:{83+4*t}], {c}")
    k.nop(8)
    k.e("ds_write_b128 v11, v[124:127]")
    k.e("s_waitcnt lgkmcnt(0)")
    k.e("s_barrier")
    k.e("s_cmp_lg_u32 s74, 0")
    k.e(f"s_cbranch_scc1 {ynext}")
    for w in range(1, 4):
        k.e(f"ds_read_b128 v[{124+4*w}:{127+4*w}], v12 offset:{w*1024}")
    k.e("s_waitcnt lgkmcnt(0)")
    for r in range(4):
        k.e(f"v_add_f32 v{124+r}, v{124+r}, v{128+r}")
        k.e(f"v_add_f32 v{132+r}, v{132+r}, v{136+r}")
    for r in range(4):
        k.e(f"v_add_f32 v{124+r}, v{124+r}, v{132+r}")
    k.e("v_cvt_pk_bf16_f32 v140, v124, v125")
    k.e("v_cvt_pk_bf16_f32 v141, v126, v127")
    k.e("v_min_u32 v140, 0xfffffffe, v140")
    k.e("v_min_u32 v141, 0xfffffffe, v141")
    k.e("s_mov_b64 exec, s[80:81]")
    k.e("buffer_store_dwordx2 v[140:141], v13, s[60:63], s25 offen sc1")
    k.e("s_mov_b64 exec, -1")
    stamp(k, 3)
    k.label(ynext)
    k.e("s_add_u32 s29, s29, 1")
    k.e(f"s_add_u32 s22, s22, {32*640}")
    k.e(f"s_add_u32 s23, s23, {32*640*16}")
    k.e(f"s_add_u32 s24, s24, {32*640*64}")
    k.e("s_add_u32 s25, s25, 10240")
    k.e(f"s_cmp_lt_u32 s29, {NS}")
    k.e(f"s_cbranch_scc1 {ly}")
    k.label(done)
    k.e("s_endpgm")
    return kernel_text(k, 512, 100, 256), f"; @launch kernel=rec_kernel grid=(104,1,1) block=(256,1,1) lds={LDS_TOTAL}"

def more_kernels():
    ks = [k_rec()]
    try:
        import kernels4
        ks += kernels4.more_kernels()
    except ImportError:
        pass
    return ks
```

```python
from asmlib import *
from gen import *
import gen
import kernels2, kernels3, kernels4
from kernels2 import WSG
from kernels3 import xred, fbits, wloc, put_frag, load_block, poll_mem, proj, stamp, SPIN_LIMIT, NLDS_FR, LDS_MEMS, LDS_EX, LDS_TOTAL

WS_FLAGS = WS_END + 0x100000
F_QKV, F_VO = 0, 72

def wait_flags2(k, cache_s, need_s, voff_v, tmp=150):
    ok = k.newlabel("wf"); lp = k.newlabel("wfl")
    k.e(f"s_cmp_ge_u32 s{cache_s}, s{need_s}")
    k.e(f"s_cbranch_scc1 {ok}")
    k.e("s_mov_b32 s69, 0")
    k.label(lp)
    k.e(f"s_mov_b32 s71, {WS_FLAGS}")
    k.e(f"buffer_load_dwordx2 v[{tmp}:{tmp+1}], v{voff_v}, s[60:63], s71 offen sc1")
    k.e("s_waitcnt vmcnt(0)")
    k.e(f"v_min_u32 v{tmp}, v{tmp}, v{tmp+1}")
    k.e("s_nop 0")
    k.e(f"v_readfirstlane_b32 s{cache_s}, v{tmp}")
    k.e("s_add_u32 s69, s69, 1")
    k.e(f"s_cmp_ge_u32 s69, {SPIN_LIMIT*4}")
    k.e(f"s_cbranch_scc1 {ok}")
    k.e(f"s_cmp_lt_u32 s{cache_s}, s{need_s}")
    k.e(f"s_cbranch_scc1 {lp}")
    k.label(ok)

def wait_flagsN(k, cache_s, need_s, voff_v, tmp=150):
    ok = k.newlabel("wn"); lp = k.newlabel("wnl"); nb = k.newlabel("wnb")
    k.e(f"s_cmp_ge_u32 s{cache_s}, s{need_s}")
    k.e(f"s_cbranch_scc1 {ok}")
    k.e("s_mov_b32 s69, 0")
    k.label(lp)
    k.e(f"s_mov_b32 s71, {WS_FLAGS}")
    k.e(f"buffer_load_dword v{tmp}, v{voff_v}, s[60:63], s71 offen sc1")
    k.e("s_add_u32 s69, s69, 1")
    k.e(f"s_cmp_ge_u32 s69, {SPIN_LIMIT*4}")
    k.e(f"s_cbranch_scc1 {nb}")
    k.e("s_waitcnt vmcnt(0)")
    k.e(f"v_cmp_gt_u32 vcc, s{need_s}, v{tmp}")
    k.e(f"s_cbranch_vccnz {lp}")
    k.label(nb)
    k.e(f"s_mov_b32 s{cache_s}, s{need_s}")
    k.e(f"s_add_u32 s71, s{need_s}, 8")
    k.e(f"v_cmp_gt_u32 vcc, s71, v{tmp}")
    k.e(f"s_cbranch_vccnz {ok}")
    k.e(f"s_mov_b32 s{cache_s}, s71")
    k.label(ok)

def put_flag(k, idx_s, val_s, tmp=150):
    sk = k.newlabel("pf")
    k.e("s_cmp_lg_u32 s74, 0")
    k.e(f"s_cbranch_scc1 {sk}")
    k.e(f"v_mov_b32 v{tmp}, s{val_s}")
    k.e(f"v_mov_b32 v{tmp+1}, 0")
    k.e(f"s_lshl_b32 s71, s{idx_s}, 2")
    k.e(f"s_add_u32 s71, s71, {WS_FLAGS}")
    k.e("s_mov_b64 exec, 1")
    k.e(f"buffer_store_dword v{tmp}, v{tmp+1}, s[60:63], s71 offen sc1")
    k.e("s_mov_b64 exec, -1")
    k.label(sk)

class WSG2(WSG):
    def __init__(self, k, *a):
        super().__init__("x", *a)
        self.k = k
    def main_loop2(self, src0_sgpr, stage_src_bytes, epilogue, nstores, flag_idx_s, pre_dma=None):
        k = self.k
        nfr = self.RT * self.KS
        per = nfr // 4
        sb = self.stage_bytes
        k.e(f"s_mul_i32 s79, s74, {per*1024}")
        k.e(f"s_add_u32 s76, s{src0_sgpr}, s79")
        k.e("s_mov_b32 s77, s79")
        k.e(f"s_add_u32 s78, s79, {sb}")
        k.e("s_mov_b32 s75, 0")
        if pre_dma:
            k.e("s_mov_b32 s68, 1"); pre_dma()
        self.dma_stage(77, 76)
        k.e(f"s_add_u32 s76, s76, {stage_src_bytes}")
        k.e("s_waitcnt vmcnt(0)")
        loop = k.newlabel("loop")
        k.label(loop)
        for half in range(2):
            skip = k.newlabel("skip"); nof = k.newlabel("nof")
            k.e(f"s_waitcnt vmcnt({nstores})")
            k.e("s_barrier")
            k.e("s_cmp_lt_u32 s75, 4")
            k.e(f"s_cbranch_scc1 {nof}")
            k.e("s_sub_u32 s68, s75, 1")
            put_flag(k, flag_idx_s, 68)
            k.label(nof)
            k.e(f"s_cmp_ge_u32 s75, {self.nstage - 1}")
            k.e(f"s_cbranch_scc1 {skip}")
            if pre_dma:
                k.e("s_add_u32 s68, s75, 2"); pre_dma()
            self.dma_stage(78 if half == 0 else 77, 76)
            k.e(f"s_add_u32 s76, s76, {stage_src_bytes}")
            k.label(skip)
            self.compute(21 if half == 0 else 22, self.acc0, self.afr0)
            epilogue()
            k.e("s_add_u32 s75, s75, 1")
            ef = k.newlabel("ef")
            k.e("s_cmp_gt_u32 s75, 2")
            k.e(f"s_cbranch_scc1 {ef}")
            k.e("s_waitcnt vmcnt(0)")
            k.e("s_barrier")
            put_flag(k, flag_idx_s, 75)
            k.label(ef)
        k.e(f"s_cmp_lt_u32 s75, {self.nstage}")
        k.e(f"s_cbranch_scc1 {loop}")
        k.e("s_waitcnt vmcnt(0)")
        k.e("s_barrier")
        put_flag(k, flag_idx_s, 75)

def emit_qkv(k, base_wg, after):
    g = WSG2(k, 20, 2, [0,1,2,3], 64, 40960)
    k.e(f"s_load_dwordx2 s[10:11], s[0:1], {KA_WQ}")
    k.e(f"s_load_dwordx2 s[12:13], s[0:1], {KA_WK}")
    k.e(f"s_load_dwordx2 s[14:15], s[0:1], {KA_WV}")
    k.e(f"s_sub_u32 s16, s2, {base_wg}")
    k.e("s_mov_b32 s18, 0")
    k.e("s_cmp_ge_u32 s16, 24"); k.e("s_addc_u32 s18, s18, 0")
    k.e("s_cmp_ge_u32 s16, 48"); k.e("s_addc_u32 s18, s18, 0")
    k.e("s_mul_i32 s19, s18, 24")
    k.e("s_sub_u32 s19, s16, s19")
    k.e("s_lshl_b32 s19, s19, 8")
    k.e("s_lshl_b32 s3, s74, 6")
    k.e("s_add_u32 s19, s19, s3")
    k.e("s_waitcnt lgkmcnt(0)")
    k.e("s_cmp_eq_u32 s18, 1")
    k.e("s_cselect_b32 s10, s12, s10"); k.e("s_cselect_b32 s11, s13, s11")
    k.e("s_cmp_eq_u32 s18, 2")
    k.e("s_cselect_b32 s10, s14, s10"); k.e("s_cselect_b32 s11, s15, s11")
    srd(k, 64, 10, D*H*E*2)
    k.e("s_mov_b32 s3, 98304")
    k.e("v_mul_lo_u32 v5, v4, s3")
    k.e("v_lshl_add_u32 v5, v3, 3, v5")
    k.e("s_lshl_b32 s70, s19, 1")
    import boot
    nq = k.newlabel("nq")
    k.e("s_cmp_lg_u32 s18, 0")
    k.e(f"s_cbranch_scc1 {nq}")
    boot.cnt_wait(k, boot.C_LN, boot.N_LN, tmp=26)
    k.label(nq)
    g.load_weights([(64, 5, 12288, 4, [0,1,2,3], 70)])
    g.acc0 = 32; g.afr0 = 64
    k.e("v_mov_b32 v21, v20")
    k.e("v_add_u32 v22, 40960, v20")
    k.e(f"s_mov_b32 s20, {WS_H1F}")
    k.e("s_mov_b32 s3, 49152")
    k.e("v_mul_lo_u32 v23, v4, s3")
    k.e("v_lshl_add_u32 v23, v3, 3, v23")
    k.e("v_add_u32 v23, s70, v23")
    k.e("s_mul_hi_u32 s22, s19, 0x1555556")
    k.e("s_mul_i32 s23, s22, 192")
    k.e("s_sub_u32 s23, s19, s23")
    k.e("v_lshrrev_b32 v24, 3, v3")
    k.e("s_lshr_b32 s3, s23, 5")
    k.e("v_add_u32 v24, s3, v24")
    k.e("v_lshlrev_b32 v24, 10, v24")
    k.e("v_bfe_u32 v25, v3, 1, 2")
    k.e("v_lshl_add_u32 v24, v25, 8, v24")
    k.e("v_lshl_add_u32 v24, v4, 6, v24")
    k.e("v_and_b32 v25, 1, v3")
    k.e("v_lshl_add_u32 v24, v25, 3, v24")
    k.e(f"s_mul_i32 s24, s22, {128*6144}")
    k.e(f"s_add_u32 s24, s24, {WS_VF}")
    k.e(f"s_mov_b32 s25, {WS_Q}")
    k.e("s_cmp_eq_u32 s18, 1")
    k.e(f"s_cselect_b32 s25, {WS_K}, s25")
    def epi():
        isv = k.newlabel("isv"); end = k.newlabel("epiend")
        for rt in range(2):
            for r in range(4):
                a = g.acc0 + rt*16
                d = 80 + (rt*4 + r)*2
                k.e(f"v_cvt_pk_bf16_f32 v{d}, v{a+r}, v{a+4+r}")
                k.e(f"v_cvt_pk_bf16_f32 v{d+1}, v{a+8+r}, v{a+12+r}")
        k.e("s_cmp_eq_u32 s18, 2")
        k.e(f"s_cbranch_scc1 {isv}")
        k.e(f"s_mul_i32 s3, s75, {32*12288}")
        k.e("s_add_u32 s3, s3, s25")
        for rt in range(2):
            for r in range(4):
                d = 80 + (rt*4 + r)*2
                k.e(f"s_add_u32 s71, s3, {(rt*16 + r)*12288}")
                k.e(f"buffer_store_dwordx2 v[{d}:{d+1}], v23, s[60:63], s71 offen sc1")
        k.e(f"s_branch {end}")
        k.label(isv)
        k.e(f"s_mul_i32 s3, s75, {2*6144}")
        k.e("s_add_u32 s3, s3, s24")
        for rt in range(2):
            for r in range(4):
                d = 80 + (rt*4 + r)*2
                k.e(f"s_add_u32 s71, s3, {rt*6144}")
                k.e(f"buffer_store_dwordx2 v[{d}:{d+1}], v24, s[60:63], s71 offen offset:{r*16} sc1")
        k.label(end)
    import boot
    boot.cnt_wait(k, boot.C_LN, boot.N_LN, tmp=26)
    boot.cnt_wait(k, boot.C_CLR, boot.N_CLR, tmp=26)
    g.main_loop2(20, 40960, epi, 8, 16)
    k.e(f"s_branch {after}")

def slice_flag_voff(k, vdst, head_s, fbase):
    k.e(f"s_mul_i32 s3, s{head_s}, 3")
    k.e("s_lshr_b32 s3, s3, 2")
    k.e(f"s_add_u32 s3, s3, {fbase}")
    k.e("s_lshl_b32 s3, s3, 2")
    k.e(f"v_mov_b32 v{vdst}, s3")

def emit_vo(k, base_wg, after):
    g = WSG2(k, 6, 2, list(range(10)), 64, 12288)
    k.e(f"s_load_dwordx2 s[10:11], s[0:1], {KA_WO}")
    k.e(f"s_sub_u32 s16, s2, {base_wg}")
    k.e("s_waitcnt lgkmcnt(0)")
    srd(k, 64, 10, H*E*D*2)
    k.e("s_movk_i32 s3, 10240")
    k.e("v_mul_lo_u32 v5, v4, s3")
    k.e("v_lshl_add_u32 v6, v3, 2, v5")
    k.e("v_lshl_add_u32 v5, v3, 3, v5")
    k.e("s_mul_i32 s19, s74, 160")
    k.e("s_mul_i32 s3, s16, 245760")
    k.e("s_lshl_b32 s26, s19, 1")
    k.e("s_add_u32 s26, s26, s3")
    k.e("s_add_u32 s27, s26, 128")
    k.e("s_add_u32 s28, s26, 256")
    g.load_weights([(64, 5, 1280, 4, [0,1,2,3], 26), (64, 5, 1280, 4, [4,5,6,7], 27), (64, 6, 1280, 2, [8,9], 28)])
    g.acc0 = 32; g.afr0 = 112
    k.e("v_mov_b32 v21, v20")
    k.e("v_add_u32 v22, 12288, v20")
    k.e(f"s_mul_i32 s20, s16, {128*6144}")
    k.e(f"s_add_u32 s20, s20, {WS_VF}")
    k.e("v_lshlrev_b32 v23, 8, v3")
    k.e("v_lshl_add_u32 v23, v4, 4, v23")
    k.e("v_lshlrev_b32 v24, 7, v3")
    k.e("v_lshl_add_u32 v24, v4, 4, v24")
    k.e("s_mul_i32 s3, s16, 3")
    k.e("s_lshr_b32 s3, s3, 2")
    k.e("s_min_u32 s3, s3, 22")
    k.e(f"s_add_u32 s3, s3, {F_QKV + 48}")
    k.e("s_lshl_b32 s3, s3, 2")
    k.e("v_mov_b32 v25, s3")
    k.e("s_mov_b32 s29, 0")
    k.e(f"s_add_u32 s17, s16, {F_VO}")
    def pre():
        wait_flags2(k, 29, 68, 25)
    def epi():
        k.e("s_lshl_b32 s3, s75, 5")
        k.e("s_add_u32 s3, s3, s16")
        k.e("s_mul_i32 s3, s3, 640")
        k.e("s_add_u32 s3, s3, s19")
        k.e("s_lshl_b32 s3, s3, 6")
        k.e(f"s_add_u32 s3, s3, {WS_VOX}")
        for t in range(10):
            a0 = g.acc0 + t*4; a1 = g.acc0 + (10 + t)*4
            d = 128 + (t % 4)*4
            k.e(f"v_cvt_pk_bf16_f32 v{d}, v{a0}, v{a0+1}")
            k.e(f"v_cvt_pk_bf16_f32 v{d+1}, v{a0+2}, v{a0+3}")
            k.e(f"v_cvt_pk_bf16_f32 v{d+2}, v{a1}, v{a1+1}")
            k.e(f"v_cvt_pk_bf16_f32 v{d+3}, v{a1+2}, v{a1+3}")
            if t < 8: off = (t//4)*64*64 + (t%4)*64; vo = 23
            else: off = 128*64 + (t-8)*64; vo = 24
            k.e(f"s_add_u32 s71, s3, {off}")
            k.e(f"buffer_store_dwordx4 v[{d}:{d+3}], v{vo}, s[60:63], s71 offen sc1")
        k.e("s_nop 1")
    import boot
    boot.cnt_wait(k, boot.C_CLR, boot.N_CLR, tmp=26)
    g.main_loop2(20, 12288, epi, 10, 17, pre)
    k.e(f"s_branch {after}")
```

```python
from mega import *
from mega_rec import F_ADONE
import mega_rec
import boot
F_SEG = 128
F_H2 = 192
F_UP = 256

import os
from kernels3 import STAMP
WS_STAMP2 = WS_END + 0x80000
def stamp2(k, base, sreg_idx, mul=1):
    if not STAMP: return
    sk = k.newlabel("stB_")
    k.e("s_cmp_lg_u32 s74, 0")
    k.e(f"s_cbranch_scc1 {sk}")
    k.e("s_memrealtime s[94:95]")
    k.e(f"s_mul_i32 s92, s{sreg_idx}, {mul*8}")
    k.e(f"s_add_u32 s92, s92, {WS_STAMP2 + base*8}")
    k.e("s_waitcnt lgkmcnt(0)")
    k.e("v_mov_b32 v96, s94")
    k.e("v_mov_b32 v97, s95")
    k.e("v_mov_b32 v98, 0")
    k.e("buffer_store_dwordx2 v[96:97], v98, s[60:63], s92 offen")
    k.label(sk)

def emit_ln2_tile(k):
    inv = fbits(1.0/640)
    k.e("s_lshl_b32 s3, s58, 4")
    k.e("v_add_u32 v5, s3, v3")
    k.e("s_movk_i32 s3, 1280")
    k.e("v_mul_lo_u32 v5, v5, s3")
    k.e("v_lshl_add_u32 v5, v4, 4, v5")
    k.e("s_mul_i32 s3, s57, 640")
    k.e("v_add_u32 v5, s3, v5")
    k.e("v_lshlrev_b32 v14, 1, v5")
    k.e("v_lshlrev_b32 v12, 5, v4")
    k.e("s_mul_i32 s3, s57, 1280")
    k.e("v_add_u32 v12, s3, v12")
    for kk in range(10):
        k.e(f"buffer_load_dwordx4 v[{40+4*kk}:{43+4*kk}], v5, s[64:67], 0 offen offset:{kk*64}")
        k.e(f"s_mov_b32 s71, {WS_ACC + kk*128}")
        k.e(f"buffer_load_dwordx4 v[{120+8*kk}:{123+8*kk}], v14, s[60:63], s71 offen")
        k.e(f"buffer_load_dwordx4 v[{124+8*kk}:{127+8*kk}], v14, s[60:63], s71 offen offset:16")
        k.e(f"s_mov_b32 s71, {2*2560 + kk*128}")
        k.e(f"buffer_load_dwordx4 a[{8*kk}:{8*kk+3}], v12, s[60:63], s71 offen")
        k.e(f"buffer_load_dwordx4 a[{8*kk+4}:{8*kk+7}], v12, s[60:63], s71 offen offset:16")
    k.e("s_waitcnt vmcnt(0)")
    for kk in range(10):
        k.e(f"s_mov_b32 s71, {3*2560 + kk*128}")
        k.e(f"buffer_load_dwordx4 a[{80+8*kk}:{83+8*kk}], v12, s[60:63], s71 offen")
        k.e(f"buffer_load_dwordx4 a[{84+8*kk}:{87+8*kk}], v12, s[60:63], s71 offen offset:16")
        k.e(f"s_mov_b32 s71, {4*2560 + kk*128}")
        k.e(f"buffer_load_dwordx4 a[{160+8*kk}:{163+8*kk}], v12, s[60:63], s71 offen")
        k.e(f"buffer_load_dwordx4 a[{164+8*kk}:{167+8*kk}], v12, s[60:63], s71 offen offset:16")
    k.e("v_mov_b32 v6, 0"); k.e("v_mov_b32 v7, 0")
    for kk in range(10):
        for d in range(4):
            r0, r1 = 120 + 8*kk + 2*d, 121 + 8*kk + 2*d
            xr_ = 40 + 4*kk + d
            k.e(f"v_cvt_pk_bf16_f32 v8, v{r0}, v{r1}")
            k.e(f"v_accvgpr_read_b32 v9, a{8*kk+2*d}")
            k.e(f"v_accvgpr_read_b32 v10, a{8*kk+2*d+1}")
            k.e(f"v_lshlrev_b32 v{r0}, 16, v8")
            k.e(f"v_and_b32 v{r1}, 0xffff0000, v8")
            k.e(f"v_mul_f32 v{r0}, v{r0}, v9")
            k.e(f"v_mul_f32 v{r1}, v{r1}, v10")
            k.e(f"v_cvt_pk_bf16_f32 v8, v{r0}, v{r1}")
            k.e(f"v_lshlrev_b32 v{r0}, 16, v8")
            k.e(f"v_and_b32 v{r1}, 0xffff0000, v8")
            k.e(f"v_lshlrev_b32 v9, 16, v{xr_}")
            k.e(f"v_and_b32 v10, 0xffff0000, v{xr_}")
            k.e(f"v_add_f32 v{r0}, v{r0}, v9")
            k.e(f"v_add_f32 v{r1}, v{r1}, v10")
            k.e(f"v_cvt_pk_bf16_f32 v{xr_}, v{r0}, v{r1}")
            k.e(f"v_lshlrev_b32 v{r0}, 16, v{xr_}")
            k.e(f"v_and_b32 v{r1}, 0xffff0000, v{xr_}")
            k.e(f"v_add_f32 v6, v6, v{r0}")
            k.e(f"v_add_f32 v7, v7, v{r1}")
        k.e(f"s_mov_b32 s71, {WS_X1}")
        k.e(f"buffer_store_dwordx4 v[{40+4*kk}:{43+4*kk}], v5, s[60:63], s71 offen offset:{kk*64} sc1")
    k.e("v_add_f32 v6, v6, v7")
    xred(k, 6, 7, "v_add_f32")
    k.e("v_lshlrev_b32 v15, 2, v2")
    k.e("s_lshl_b32 s3, s74, 8")
    k.e("s_add_u32 s3, s3, 0x21000")
    k.e("v_add_u32 v16, s3, v15")
    k.e("s_xor_b32 s3, s74, 2")
    k.e("s_lshl_b32 s3, s3, 8")
    k.e("s_add_u32 s3, s3, 0x21000")
    k.e("v_add_u32 v17, s3, v15")
    k.e("ds_write_b32 v16, v6")
    k.e("s_waitcnt lgkmcnt(0)")
    k.e("s_barrier")
    k.e("ds_read_b32 v7, v17")
    k.e("s_waitcnt lgkmcnt(0)")
    k.e("v_add_f32 v6, v6, v7")
    k.e(f"v_mul_f32 v6, 0x{inv:08x}, v6")
    k.e("v_mov_b32 v10, 0"); k.e("v_mov_b32 v11, 0")
    for kk in range(10):
        for d in range(4):
            r0, r1 = 120 + 8*kk + 2*d, 121 + 8*kk + 2*d
            k.e(f"v_sub_f32 v{r0}, v{r0}, v6")
            k.e(f"v_sub_f32 v{r1}, v{r1}, v6")
            k.e(f"v_fmac_f32 v10, v{r0}, v{r0}")
            k.e(f"v_fmac_f32 v11, v{r1}, v{r1}")
    k.e("v_add_f32 v10, v10, v11")
    xred(k, 10, 11, "v_add_f32")
    k.e("ds_write_b32 v16, v10 offset:1024")
    k.e("s_waitcnt lgkmcnt(0)")
    k.e("s_barrier")
    k.e("ds_read_b32 v11, v17 offset:1024")
    k.e("s_waitcnt lgkmcnt(0)")
    k.e("v_add_f32 v10, v10, v11")
    k.e("v_mov_b32 v11, 0x3727c5ac")
    k.e(f"v_fmac_f32 v11, 0x{inv:08x}, v10")
    k.e("v_rsq_f32 v11, v11")
    k.e("s_mul_i32 s3, s58, 20480")
    k.e("s_mul_i32 s71, s57, 10240")
    k.e("s_add_u32 s3, s3, s71")
    k.e(f"s_add_u32 s3, s3, {WS_H2F}")
    k.e("v_lshlrev_b32 v13, 4, v2")
    k.e("s_waitcnt vmcnt(0)")
    for kk in range(10):
        for d in range(4):
            r0, r1 = 120 + 8*kk + 2*d, 121 + 8*kk + 2*d
            k.e(f"v_accvgpr_read_b32 v8, a{80+8*kk+2*d}")
            k.e(f"v_accvgpr_read_b32 v9, a{81+8*kk+2*d}")
            k.e(f"v_accvgpr_read_b32 v18, a{160+8*kk+2*d}")
            k.e(f"v_accvgpr_read_b32 v19, a{161+8*kk+2*d}")
            k.e(f"v_mul_f32 v{r0}, v{r0}, v11")
            k.e(f"v_mul_f32 v{r1}, v{r1}, v11")
            k.e(f"v_fma_f32 v8, v{r0}, v18, v8")
            k.e(f"v_fma_f32 v9, v{r1}, v19, v9")
            k.e(f"v_cvt_pk_bf16_f32 v{40+4*kk+d}, v8, v9")
        k.e(f"buffer_store_dwordx4 v[{40+4*kk}:{43+4*kk}], v13, s[60:63], s3 offen offset:{(kk%4)*1024} sc1")
        if kk % 4 == 3: k.e("s_add_u32 s3, s3, 4096")

def emit_attn(k, done):
    top = k.newlabel("attn_top")
    k.e(f"s_load_dwordx2 s[10:11], s[0:1], {KA_X}")
    k.e(f"s_load_dwordx2 s[12:13], s[0:1], {KA_DBG}")
    k.e("s_waitcnt lgkmcnt(0)")
    srd(k, 64, 10, T*D*2)
    srd(k, 88, 12, 256)
    k.e("s_mov_b32 s43, 0")
    boot.cnt_wait(k, boot.C_CLR, boot.N_CLR, tmp=5)
    k.label(top)
    k.e("s_barrier")
    g0 = k.newlabel("grab")
    k.e("s_cmp_lg_u32 s74, 0")
    k.e(f"s_cbranch_scc1 {g0}")
    k.e("v_mov_b32 v5, 1")
    k.e("v_mov_b32 v6, 0")
    k.e("s_mov_b64 exec, 1")
    k.e("buffer_atomic_add v5, v6, s[88:91], 0 offen sc0 sc1")
    k.e("s_waitcnt vmcnt(0)")
    k.e("v_mov_b32 v6, 0x20000")
    k.e("ds_write_b32 v6, v5")
    k.e("s_mov_b64 exec, -1")
    k.e("s_waitcnt lgkmcnt(0)")
    k.label(g0)
    k.e("s_barrier")
    k.e("v_mov_b32 v6, 0x20000")
    k.e("ds_read_b32 v5, v6")
    k.e("s_waitcnt lgkmcnt(0)")
    k.e("v_readfirstlane_b32 s19, v5")
    k.e("s_cmp_ge_u32 s19, 2048")
    k.e(f"s_cbranch_scc1 {done}")
    k.e("s_lshr_b32 s20, s19, 5")
    k.e("s_and_b32 s21, s19, 3")
    k.e("s_mul_i32 s21, s21, 160")
    k.e("s_bfe_u32 s18, s19, 0x30002")
    k.e("v_min_u32 v5, 23, v2")
    k.e("v_lshlrev_b32 v5, 2, v5")
    k.e("s_add_u32 s68, s20, 1")
    wait_flagsN(k, 43, 68, 5, tmp=6)
    w1 = k.newlabel("wr"); w2 = k.newlabel("wr2"); w3 = k.newlabel("wr3")
    k.e("s_add_u32 s3, s20, 2")
    k.e("s_min_u32 s3, s3, 64")
    k.e("s_mul_i32 s3, s3, 10240")
    k.e(f"s_add_u32 s3, s3, {WS_MEM}")
    k.e("v_lshlrev_b32 v5, 2, v2")
    k.e("s_mov_b32 s69, 0")
    k.label(w1)
    k.e("buffer_load_dword v6, v5, s[60:63], s3 offen sc1")
    k.e("s_add_u32 s69, s69, 1")
    k.e(f"s_cmp_ge_u32 s69, {SPIN_LIMIT*16}")
    k.e(f"s_cbranch_scc1 {w2}")
    k.e("s_waitcnt vmcnt(0)")
    k.e("v_cmp_eq_u32 vcc, -1, v6")
    k.e(f"s_cbranch_vccz {w2}")
    k.e("s_sleep 32")
    k.e(f"s_branch {w1}")
    k.label(w2)
    k.e("s_cmp_lg_u32 s20, 63")
    k.e(f"s_cbranch_scc1 {w3}")
    k.e("v_mov_b32 v5, 0")
    k.e(f"s_mov_b32 s3, {WS_FLAGS + 4*F_ADONE}")
    w4 = k.newlabel("wr4")
    k.label(w4)
    k.e("buffer_load_dword v6, v5, s[60:63], s3 offen sc1")
    k.e("s_add_u32 s69, s69, 1")
    k.e(f"s_cmp_ge_u32 s69, {SPIN_LIMIT*16}")
    k.e(f"s_cbranch_scc1 {w3}")
    k.e("s_waitcnt vmcnt(0)")
    k.e("v_cmp_gt_u32 vcc, 32, v6")
    k.e(f"s_cbranch_vccnz {w4}")
    k.label(w3)
    pass
    k.e("v_cmp_le_u32 s[84:85], 32, v2")
    k.e("v_lshlrev_b32 v5, 2, v4")
    k.e("v_sub_u32 v5, v5, v3")
    for r in range(4):
        k.e(f"v_cmp_ge_i32 s[{44+2*r}:{45+2*r}], {-r}, v5")
    k.e("s_movk_i32 s3, 12288")
    k.e("v_mul_lo_u32 v6, v3, s3")
    k.e("v_lshl_add_u32 v6, v4, 4, v6")
    k.e("v_and_b32 v7, 7, v3")
    k.e("v_mul_u32_u24 v7, 384, v7")
    k.e("v_lshl_add_u32 v7, v4, 4, v7")
    k.e("v_lshlrev_b32 v252, 6, v3")
    k.e("v_lshl_add_u32 v252, v4, 4, v252")
    k.e("v_and_b32 v253, 1, v4")
    k.e("v_lshlrev_b32 v253, 3, v253")
    k.e("v_lshl_add_u32 v253, v3, 4, v253")
    k.e("v_mov_b32 v254, 0xff800000")
    k.e("s_lshl_b32 s22, s18, 2")
    k.e("s_add_u32 s22, s22, s74")
    for i in range(80):
        k.e(f"v_mov_b32 v{100+i}, 0")
    SETS = [dict(Q=20, K=180, VX=256, VM=296), dict(Q=320, K=368, VX=440, VM=480)]
    def loads(S, hs):
        k.e(f"s_mul_i32 s24, s20, {32*12288}")
        k.e(f"s_mul_i32 s3, s{hs}, 384")
        k.e("s_add_u32 s24, s24, s3")
        k.e(f"s_add_u32 s25, s24, {WS_Q}")
        k.e(f"s_add_u32 s26, s24, {WS_K}")
        k.e("s_lshl_b32 s27, s20, 5")
        k.e(f"s_add_u32 s27, s27, s{hs}")
        k.e("s_mul_i32 s28, s27, 3072")
        k.e(f"s_add_u32 s28, s28, {WS_KM}")
        k.e("s_mul_i32 s29, s27, 640")
        k.e("s_add_u32 s29, s29, s21")
        k.e("s_lshl_b32 s30, s29, 6")
        k.e(f"s_add_u32 s30, s30, {WS_VOX}")
        k.e("s_lshl_b32 s31, s29, 4")
        k.e(f"s_add_u32 s31, s31, {WS_VOM}")
        for qt in range(2):
            k.e(f"s_add_u32 s71, s25, {qt*16*12288}")
            for t in range(6):
                k.e(f"buffer_load_dwordx4 {reg(S['Q'] + (qt*6+t)*4, 4)}, v6, s[60:63], s71 offen offset:{t*64}")
        for t in range(6):
            k.e(f"buffer_load_dwordx4 {reg(S['K'] + t*4, 4)}, v7, s[60:63], s28 offen offset:{t*64}")
        for u in range(2):
            k.e(f"s_add_u32 s71, s26, {u*16*12288}")
            for t in range(6):
                k.e(f"buffer_load_dwordx4 {reg(S['K'] + ((u+1)*6+t)*4, 4)}, v6, s[60:63], s71 offen offset:{t*64}")
        for dt in range(10):
            k.e(f"s_add_u32 s71, s30, {dt*1024}")
            k.e(f"buffer_load_dwordx4 {reg(S['VX'] + 4*dt, 4)}, v252, s[60:63], s71 offen")
            k.e(f"buffer_load_dwordx2 {reg(S['VM'] + 2*dt, 2)}, v253, s[60:63], s31 offen offset:{dt*256}")
    NL = 50
    def compute(S, more):
        k.e(f"s_waitcnt vmcnt({(NL if more else 0) + 20})" if (NL if more else 0) + 20 <= 63 else "s_waitcnt vmcnt(63)")
        if (NL if more else 0) + 20 > 63:
            k.e(f"s_waitcnt vmcnt({NL})")
        tiles = [(0,0),(1,0),(0,1),(1,1),(2,1)]
        sreg = {(T_,qt): 68 + 4*i for i,(T_,qt) in enumerate(tiles)}
        for t in range(6):
            for (T_, qt) in tiles:
                a = sreg[(T_,qt)]
                c = "0" if t == 0 else f"v[{a}:{a+3}]"
                k.e(f"v_mfma_f32_16x16x32_bf16 v[{a}:{a+3}], {reg(S['K'] + (T_*6+t)*4, 4)}, {reg(S['Q'] + (qt*6+t)*4, 4)}, {c}")
        k.nop(8)
        sc = fbits(192 ** -0.5)
        for i in range(0, 20, 2):
            a = 68 + i
            k.e(f"v_cvt_pk_bf16_f32 v88, v{a}, v{a+1}")
            k.e(f"v_lshlrev_b32 v{a}, 16, v88")
            k.e(f"v_and_b32 v{a+1}, 0xffff0000, v88")
            k.e(f"v_mul_f32 v{a}, 0x{sc:08x}, v{a}")
            k.e(f"v_mul_f32 v{a+1}, 0x{sc:08x}, v{a+1}")
            k.e(f"v_cvt_pk_bf16_f32 v88, v{a}, v{a+1}")
            k.e(f"v_lshlrev_b32 v{a}, 16, v88")
            k.e(f"v_and_b32 v{a+1}, 0xffff0000, v88")
        for qt in range(2):
            a = sreg[(0,qt)]
            for r in range(4):
                k.e(f"v_cndmask_b32 v{a+r}, v{a+r}, v254, s[84:85]")
            a = sreg[(qt+1, qt)]
            for r in range(4):
                k.e(f"v_cndmask_b32 v{a+r}, v254, v{a+r}, s[{44+2*r}:{45+2*r}]")
        for qt in range(2):
            rs = []
            for T_ in range(qt + 2):
                rs += [sreg[(T_,qt)] + r for r in range(4)]
            k.e(f"v_max3_f32 v88, v{rs[0]}, v{rs[1]}, v{rs[2]}")
            i = 3
            while i < len(rs):
                if i + 1 < len(rs): k.e(f"v_max3_f32 v88, v88, v{rs[i]}, v{rs[i+1]}"); i += 2
                else: k.e(f"v_max_f32 v88, v88, v{rs[i]}"); i += 1
            xred(k, 88, 89, "v_max_f32")
            k.e("v_mul_f32 v88, 0xbfb8aa3b, v88")
            k.e("s_mov_b32 s3, 0x3fb8aa3b")
            for r_ in rs: k.e(f"v_fma_f32 v{r_}, v{r_}, s3, v88")
            for r_ in rs: k.e(f"v_exp_f32 v{r_}, v{r_}")
            k.e("s_nop 0")
            k.e(f"v_add_f32 v89, v{rs[0]}, v{rs[1]}")
            for r_ in rs[2:]: k.e(f"v_add_f32 v89, v89, v{r_}")
            xred(k, 89, 90, "v_add_f32")
            k.e("v_rcp_f32 v89, v89")
            k.e("s_nop 0")
            for r_ in rs: k.e(f"v_mul_f32 v{r_}, v{r_}, v89")
            pm = 8 + 6*qt; px = 10 + 6*qt
            a = sreg[(0,qt)]
            k.e(f"v_cvt_pk_bf16_f32 v{pm}, v{a}, v{a+1}")
            k.e(f"v_cvt_pk_bf16_f32 v{pm+1}, v{a+2}, v{a+3}")
            a = sreg[(1,qt)]
            k.e(f"v_cvt_pk_bf16_f32 v{px}, v{a}, v{a+1}")
            k.e(f"v_cvt_pk_bf16_f32 v{px+1}, v{a+2}, v{a+3}")
            if qt == 1:
                a = sreg[(2,qt)]
                k.e(f"v_cvt_pk_bf16_f32 v{px+2}, v{a}, v{a+1}")
                k.e(f"v_cvt_pk_bf16_f32 v{px+3}, v{a+2}, v{a+3}")
            else:
                k.e(f"v_mov_b32 v{px+2}, 0")
                k.e(f"v_mov_b32 v{px+3}, 0")
        k.e(f"s_waitcnt vmcnt({NL if more else 0})")
        k.e("s_nop 1")
        for dt in range(10):
            for qt in range(2):
                a = 100 + (dt*2 + qt)*4
                px = 10 + 6*qt
                k.e(f"v_mfma_f32_16x16x32_bf16 v[{a}:{a+3}], {reg(S['VX'] + 4*dt, 4)}, v[{px}:{px+3}], v[{a}:{a+3}]")
        for dt in range(10):
            for qt in range(2):
                a = 100 + (dt*2 + qt)*4
                pm = 8 + 6*qt
                k.e(f"v_mfma_f32_16x16x16_bf16 v[{a}:{a+3}], {reg(S['VM'] + 2*dt, 2)}, v[{pm}:{pm+1}], v[{a}:{a+3}]")
    loads(SETS[0], 22)
    for i in range(1):
        more = False
        if more:
            k.e(f"s_add_u32 s23, s22, {i+1}")
            loads(SETS[(i+1) % 2], 23)
        compute(SETS[i % 2], more)
    k.nop(8)
    k.e("v_lshlrev_b32 v5, 4, v2")
    k.e("s_mul_i32 s3, s74, 20480")
    k.e("v_add_u32 v6, s3, v5")
    for tl in range(20):
        k.e(f"ds_write_b128 v6, v[{100+4*tl}:{103+4*tl}] offset:{tl*1024}")
    k.e("s_waitcnt lgkmcnt(0)")
    k.e("s_barrier")
    k.e("s_mul_i32 s3, s74, 5120")
    k.e("v_add_u32 v6, s3, v5")
    k.e("v_add_u32 v9, 40960, v6")
    for j in range(5):
        for w in range(4):
            k.e(f"ds_read_b128 v[{100+(j*4+w)*4}:{103+(j*4+w)*4}], v{6 if w < 2 else 9} offset:{(w%2)*20480 + j*1024}")
    k.e("s_movk_i32 s3, 2560")
    k.e("v_mul_lo_u32 v7, v3, s3")
    k.e("v_lshl_add_u32 v7, v4, 4, v7")
    k.e("s_waitcnt lgkmcnt(0)")
    for j in range(5):
        k.e(f"s_mul_i32 s30, s74, 5")
        k.e(f"s_add_u32 s30, s30, {j}")
        k.e("s_lshr_b32 s31, s30, 1")
        k.e("s_and_b32 s30, s30, 1")
        k.e("s_lshl_b32 s31, s31, 4")
        k.e("s_add_u32 s31, s31, s21")
        k.e("s_lshl_b32 s32, s20, 1")
        k.e("s_add_u32 s32, s32, s30")
        k.e(f"s_mul_i32 s32, s32, {16*2560}")
        k.e("s_lshl_b32 s33, s31, 2")
        k.e("s_add_u32 s32, s32, s33")
        k.e(f"s_add_u32 s32, s32, {WS_ACC}")
        b_ = 100 + j*16
        for r in range(4):
            k.e(f"v_add_f32 v{b_+r}, v{b_+r}, v{b_+4+r}")
            k.e(f"v_add_f32 v{b_+8+r}, v{b_+8+r}, v{b_+12+r}")
            k.e(f"v_add_f32 v{b_+r}, v{b_+r}, v{b_+8+r}")
        for r in range(4):
            k.e(f"buffer_atomic_add_f32 v{b_+r}, v7, s[60:63], s32 offen offset:{4*r}")
    k.e("s_waitcnt vmcnt(0)")
    pass
    k.e("s_barrier")
    g1 = k.newlabel("segc")
    k.e("s_cmp_lg_u32 s74, 0")
    k.e(f"s_cbranch_scc1 {g1}")
    k.e("v_mov_b32 v5, 1")
    k.e("v_mov_b32 v6, 0")
    k.e("s_lshl_b32 s71, s20, 2")
    k.e(f"s_add_u32 s71, s71, {WS_FLAGS + 4*F_SEG}")
    k.e("s_mov_b64 exec, 1")
    k.e("buffer_atomic_add v5, v6, s[60:63], s71 offen sc0 sc1")
    k.e("s_waitcnt vmcnt(0)")
    k.e("v_mov_b32 v6, 0x20004")
    k.e("ds_write_b32 v6, v5")
    k.e("s_mov_b64 exec, -1")
    k.e("s_waitcnt lgkmcnt(0)")
    k.label(g1)
    k.e("s_barrier")
    k.e("v_mov_b32 v6, 0x20004")
    k.e("ds_read_b32 v5, v6")
    k.e("s_waitcnt lgkmcnt(0)")
    k.e("v_readfirstlane_b32 s3, v5")
    k.e("s_cmp_lg_u32 s3, 31")
    k.e(f"s_cbranch_scc1 {top}")
    k.e("s_lshl_b32 s58, s20, 1")
    k.e("s_and_b32 s3, s74, 1")
    k.e("s_add_u32 s58, s58, s3")
    k.e("s_lshr_b32 s57, s74, 1")
    emit_ln2_tile(k)
    k.e("s_waitcnt vmcnt(0)")
    k.e("s_barrier")
    k.e(f"s_add_u32 s68, s20, {F_H2}")
    k.e("s_mov_b32 s59, 1")
    put_flag(k, 68, 59, tmp=5)
    k.e(f"s_branch {top}")

class WSG3(WSG2):
    def main_loop3(self, src0_sgpr, stage_src_bytes, epilogue, flag_idx_s, pre_dma):
        k = self.k
        nfr = self.RT * self.KS
        per = nfr // 4
        k.e(f"s_mul_i32 s79, s74, {per*1024}")
        k.e(f"s_add_u32 s76, s{src0_sgpr}, s79")
        k.e("s_mov_b32 s77, s79")
        k.e("s_mov_b32 s75, 0")
        loop = k.newlabel("loop")
        k.label(loop)
        pre_dma()
        self.dma_stage(77, 76)
        k.e(f"s_add_u32 s76, s76, {stage_src_bytes}")
        k.e("s_waitcnt vmcnt(0)")
        k.e("s_barrier")
        self.compute(21, self.acc0, self.afr0)
        epilogue()
        k.e("s_add_u32 s75, s75, 1")
        k.e("s_waitcnt vmcnt(0)")
        k.e("s_barrier")
        if flag_idx_s is not None:
            put_flag(k, flag_idx_s, 75)
        if STAMP:
            k.e("s_lshl_b32 s93, s2, 6")
            k.e("s_add_u32 s93, s93, s75")
            stamp2(k, 4096, 93, 1)
        k.e(f"s_cmp_lt_u32 s75, {self.nstage}")
        k.e(f"s_cbranch_scc1 {loop}")

def emit_up(k, base_wg, after):
    g = WSG3(k, 20, 2, [0,1,2,3], 32, 40960)
    k.e(f"s_load_dwordx2 s[10:11], s[0:1], {KA_W1}")
    k.e(f"s_load_dwordx2 s[12:13], s[0:1], {KA_W3}")
    k.e(f"s_sub_u32 s18, s2, {base_wg}")
    k.e("s_cmp_ge_u32 s18, 12")
    k.e("s_cselect_b32 s15, 1, 0")
    k.e("s_mul_i32 s16, s15, 12")
    k.e("s_sub_u32 s16, s18, s16")
    k.e("s_lshl_b32 s19, s16, 7")
    k.e("s_lshl_b32 s3, s74, 5")
    k.e("s_add_u32 s19, s19, s3")
    k.e("s_waitcnt lgkmcnt(0)")
    srd(k, 64, 10, D*F*2)
    srd(k, 84, 12, D*F*2)
    k.e("s_movk_i32 s3, 24576")
    k.e("v_mul_lo_u32 v5, v4, s3")
    k.e("v_lshl_add_u32 v5, v3, 2, v5")
    k.e("s_lshl_b32 s70, s19, 1")
    g.load_weights([(64, 5, 3072, 2, [0,1], 70), (84, 5, 3072, 2, [2,3], 70)])
    g.acc0 = 32; g.afr0 = 64
    k.e("v_mov_b32 v21, v20")
    k.e("s_mul_i32 s20, s15, 40960")
    k.e(f"s_add_u32 s20, s20, {WS_H2F}")
    k.e("v_lshrrev_b32 v23, 2, v3")
    k.e("v_lshlrev_b32 v23, 8, v23")
    k.e("v_lshl_add_u32 v23, v4, 6, v23")
    k.e("v_and_b32 v24, 3, v3")
    k.e("v_lshl_add_u32 v23, v24, 2, v23")
    k.e("s_lshr_b32 s21, s19, 5")
    k.e("s_lshl_b32 s21, s21, 10")
    k.e(f"s_add_u32 s21, s21, {WS_G}")
    k.e(f"s_add_u32 s17, s18, {F_UP}")
    k.e("v_mov_b32 v25, 0")
    def pre():
        lp = k.newlabel("upw"); ok = k.newlabel("upok")
        k.e("s_lshl_b32 s3, s75, 1")
        k.e("s_add_u32 s3, s3, s15")
        k.e("s_lshl_b32 s3, s3, 2")
        k.e(f"s_add_u32 s3, s3, {WS_FLAGS + 4*F_H2}")
        k.e("s_mov_b32 s69, 0")
        k.label(lp)
        k.e("buffer_load_dword v26, v25, s[60:63], s3 offen sc1")
        k.e("s_add_u32 s69, s69, 1")
        k.e(f"s_cmp_ge_u32 s69, {SPIN_LIMIT*16}")
        k.e(f"s_cbranch_scc1 {ok}")
        k.e("s_waitcnt vmcnt(0)")
        k.e("v_cmp_eq_u32 vcc, 0, v26")
        k.e(f"s_cbranch_vccz {ok}")
        k.e("s_sleep 16")
        k.e(f"s_branch {lp}")
        k.label(ok)
    def epi():
        k.e("s_lshl_b32 s3, s75, 1")
        k.e("s_add_u32 s3, s3, s15")
        k.e("s_mul_i32 s3, s3, 98304")
        k.e("s_add_u32 s3, s3, s21")
        for rt in range(2):
            a = g.acc0 + rt*16
            for r in range(4):
                k.e(f"v_cvt_pk_bf16_f32 v80, v{a+r}, v{a+4+r}")
                k.e(f"v_cvt_pk_bf16_f32 v81, v{a+8+r}, v{a+12+r}")
                k.e("v_lshlrev_b32 v82, 16, v80")
                k.e("v_and_b32 v83, 0xffff0000, v80")
                k.e("v_mul_f32 v84, 0xbfb8aa3b, v82")
                k.e("v_mul_f32 v85, 0xbfb8aa3b, v83")
                k.e("v_exp_f32 v84, v84")
                k.e("v_exp_f32 v85, v85")
                k.e("s_nop 0")
                k.e("v_add_f32 v84, 1.0, v84")
                k.e("v_add_f32 v85, 1.0, v85")
                k.e("v_rcp_f32 v84, v84")
                k.e("v_rcp_f32 v85, v85")
                k.e("s_nop 0")
                k.e("v_mul_f32 v82, v82, v84")
                k.e("v_mul_f32 v83, v83, v85")
                k.e("v_cvt_pk_bf16_f32 v80, v82, v83")
                k.e("v_lshlrev_b32 v82, 16, v80")
                k.e("v_and_b32 v83, 0xffff0000, v80")
                k.e("v_lshlrev_b32 v84, 16, v81")
                k.e("v_and_b32 v85, 0xffff0000, v81")
                k.e("v_mul_f32 v82, v82, v84")
                k.e("v_mul_f32 v83, v83, v85")
                d = 88 + rt*4 + r
                k.e(f"v_cvt_pk_bf16_f32 v{d}, v82, v83")
                k.e(f"s_add_u32 s71, s3, {rt*49152}")
                k.e(f"buffer_store_dword v{d}, v23, s[60:63], s71 offen offset:{r*16} sc1")
    boot.cnt_wait(k, boot.C_CLR, boot.N_CLR, tmp=26)
    g.main_loop3(20, 81920, epi, 17, pre)
    k.e(f"s_branch {after}")

def emit_down(k, base_wg, after):
    g = WSG3(k, 48, 1, [0,1], 32, 49152)
    k.e(f"s_load_dwordx2 s[10:11], s[0:1], {KA_W2}")
    k.e(f"s_load_dwordx2 s[12:13], s[0:1], {KA_OUT}")
    k.e(f"s_sub_u32 s18, s2, {base_wg}")
    k.e("s_mul_hi_u32 s15, s18, 0x33333334")
    k.e("s_mul_i32 s16, s15, 5")
    k.e("s_sub_u32 s16, s18, s16")
    k.e("s_lshl_b32 s19, s16, 7")
    k.e("s_lshl_b32 s3, s74, 5")
    k.e("s_add_u32 s19, s19, s3")
    k.e("s_waitcnt lgkmcnt(0)")
    srd(k, 64, 10, F*D*2)
    srd(k, 84, 12, T*D*2)
    k.e("s_movk_i32 s3, 10240")
    k.e("v_mul_lo_u32 v5, v4, s3")
    k.e("v_lshl_add_u32 v5, v3, 2, v5")
    k.e("s_lshl_b32 s70, s19, 1")
    k.e("v_lshlrev_b32 v6, 3, v3")
    k.e("s_lshl_b32 s3, s19, 2")
    k.e(f"s_add_u32 s3, s3, {5*2560}")
    boot.cnt_wait(k, boot.C_MOD, boot.N_MOD, tmp=100)
    k.e("buffer_load_dwordx2 v[26:27], v6, s[60:63], s3 offen")
    g.load_weights([(64, 5, 1280, 2, [0,1], 70)])
    g.acc0 = 32; g.afr0 = 64
    k.e("v_mov_b32 v21, v20")
    k.e("s_mul_i32 s20, s15, 49152")
    k.e(f"s_add_u32 s20, s20, {WS_G}")
    k.e("s_movk_i32 s3, 5120")
    k.e("v_mul_lo_u32 v23, v4, s3")
    k.e("v_lshl_add_u32 v23, v3, 2, v23")
    k.e("v_min_u32 v25, 11, v2")
    k.e(f"v_add_u32 v25, {F_UP}, v25")
    k.e("s_lshr_b32 s3, s15, 1")
    k.e("s_mul_i32 s3, s3, 12")
    k.e("v_add_u32 v25, s3, v25")
    k.e("v_lshlrev_b32 v25, 2, v25")
    k.e("s_mov_b32 s43, 0")
    def pre():
        k.e("s_add_u32 s68, s75, 1")
        wait_flagsN(k, 43, 68, 25, tmp=100)
    def epi():
        k.e("s_lshl_b32 s3, s75, 2")
        k.e("s_add_u32 s3, s3, s15")
        k.e(f"s_mul_i32 s3, s3, {16*1280}")
        k.e("s_add_u32 s3, s3, s70")
        k.e(f"s_add_u32 s23, s3, {WS_X1}")
        for r in range(4):
            k.e(f"buffer_load_dword v{80+r}, v23, s[60:63], s23 offen offset:{r*1280}")
        a = g.acc0
        for r in range(4):
            k.e(f"v_cvt_pk_bf16_f32 v84, v{a+r}, v{a+4+r}")
            k.e("v_lshlrev_b32 v85, 16, v84")
            k.e("v_and_b32 v86, 0xffff0000, v84")
            k.e("v_mul_f32 v85, v85, v26")
            k.e("v_mul_f32 v86, v86, v27")
            k.e(f"v_cvt_pk_bf16_f32 v{88+r}, v85, v86")
        k.e("s_waitcnt vmcnt(0)")
        for r in range(4):
            k.e(f"v_lshlrev_b32 v85, 16, v{88+r}")
            k.e(f"v_and_b32 v86, 0xffff0000, v{88+r}")
            k.e(f"v_lshlrev_b32 v84, 16, v{80+r}")
            k.e(f"v_and_b32 v87, 0xffff0000, v{80+r}")
            k.e("v_add_f32 v85, v85, v84")
            k.e("v_add_f32 v86, v86, v87")
            k.e(f"v_cvt_pk_bf16_f32 v{92+r}, v85, v86")
            k.e(f"buffer_store_dword v{92+r}, v23, s[84:87], s3 offen offset:{r*1280}")
    boot.cnt_wait(k, boot.C_CLR, boot.N_CLR, tmp=100)
    g.main_loop3(20, 4*49152, epi, None, pre)
    k.e(f"s_branch {after}")

def k_mega():
    k = K("mega_kernel")
    done = k.newlabel("done"); LQ = k.newlabel("qkv"); LV = k.newlabel("vo"); LA = k.newlabel("attn"); LU = k.newlabel("up"); LD = k.newlabel("down")
    TG = dict(LQ=LQ, LV=LV, LA=LA, LU=LU, LD=LD, done=done)
    NT = 4
    def tl(i, name):
        return f"mega_T{i}_{name}" if i < NT else TG[name]
    cur = [0]
    def tramp():
        i = cur[0]; sk = k.newlabel("tsk")
        k.e(f"s_branch {sk}")
        for name in TG:
            k.label(tl(i, name)); k.e(f"s_branch {tl(i+1, name)}")
        k.label(sk)
        cur[0] += 1
    k.tramp = tramp
    ok0 = k.newlabel("ok0")
    k.e("s_cmp_lt_u32 s2, 256")
    k.e(f"s_cbranch_scc1 {ok0}")
    k.e("s_endpgm")
    k.label(ok0)
    k.e(f"s_load_dwordx2 s[8:9], s[0:1], {KA_WS}")
    k.e(f"s_load_dwordx2 s[12:13], s[0:1], {KA_DBG}")
    k.e("v_lshrrev_b32 v1, 6, v0")
    k.e("v_and_b32 v2, 63, v0")
    k.e("v_and_b32 v3, 15, v0")
    k.e("v_bfe_u32 v4, v0, 4, 2")
    k.e("v_readfirstlane_b32 s74, v1")
    k.e("v_lshlrev_b32 v20, 4, v2")
    k.e("s_mov_b32 s72, 0x05040100")
    k.e("s_mov_b32 s73, 0x07060302")
    k.e("s_waitcnt lgkmcnt(0)")
    srd(k, 60, 8, WS_SIZE)
    srd(k, 88, 12, 256)
    stamp2(k, 2000, 2, 1)
    nb = k.newlabel("nboot"); nb2 = k.newlabel("nboot2"); nm = k.newlabel("nmod")
    k.e("s_cmp_lt_u32 s2, 64")
    k.e(f"s_cbranch_scc1 {nb2}")
    k.e("s_cmp_ge_u32 s2, 104")
    k.e(f"s_cbranch_scc1 {nb}")
    k.e("s_sub_u32 s98, s2, 64")
    k.e("s_cmp_ge_u32 s98, 30")
    k.e(f"s_cbranch_scc1 {nm}")
    boot.emit_mod(k, 98)
    k.label(nm)
    k.e(f"s_branch {nb2}")
    k.label(nb)
    k.e("s_cmp_lt_u32 s2, 208")
    k.e(f"s_cbranch_scc1 {nb2}")
    k.e("s_sub_u32 s98, s2, 208")
    k.e("s_lshl_b32 s98, s98, 2")
    k.e("s_add_u32 s98, s98, s74")
    boot.emit_ln1(k, 98)
    nb3 = k.newlabel("nboot3")
    k.e(f"s_branch {nb3}")
    k.label(nb2)
    stamp2(k, 2300, 2, 1)
    boot.emit_clear(k, 2)
    k.label(nb3)
    stamp2(k, 3000, 2, 1)
    k.e("s_cmp_ge_u32 s2, 252")
    k.e(f"s_cbranch_scc1 {tl(0,'LA')}")
    k.e("s_cmp_ge_u32 s2, 232")
    k.e(f"s_cbranch_scc1 {tl(0,'LD')}")
    k.e("s_cmp_ge_u32 s2, 208")
    k.e(f"s_cbranch_scc1 {tl(0,'LU')}")
    k.e("s_cmp_ge_u32 s2, 176")
    k.e(f"s_cbranch_scc1 {tl(0,'LV')}")
    k.e("s_cmp_ge_u32 s2, 104")
    k.e(f"s_cbranch_scc1 {tl(0,'LQ')}")
    mega_rec.emit_rec(k, [tl(0,'LA'), tl(1,'LA'), tl(2,'LA')])
    tramp()
    k.label(LQ)
    emit_qkv(k, 104, tl(3,'LA'))
    k.label(LV)
    emit_vo(k, 176, tl(3,'LA'))
    tramp()
    k.label(LA)
    emit_attn(k, done)
    k.label(LU)
    emit_up(k, 208, done)
    k.label(LD)
    emit_down(k, 232, done)
    k.label(done)
    k.e("s_endpgm")
    return kernel_text(k, 512, 100, 256), f"; @launch kernel=mega_kernel grid=(256,1,1) block=(256,1,1) lds={LDS_TOTAL}"
```

```python
from mega import *
F_ADONE = 104
def emit_rec(k, after):
    done = after[0]; LB = k.newlabel("roleB"); LY = k.newlabel("roleY")
    k.e(f"s_load_dwordx4 s[12:15], s[0:1], {KA_WQ}")
    k.e(f"s_load_dwordx4 s[16:19], s[0:1], {KA_WV}")
    k.e("v_and_b32 v5, 7, v0")
    k.e("v_cmp_gt_u32 s[80:81], 8, v3")
    k.e("v_cmp_gt_u32 s[82:83], 32, v2")
    k.e("s_nop 1")
    k.e("s_and_b64 s[82:83], s[82:83], s[80:81]")
    k.e("v_cmp_le_u32 s[84:85], 32, v2")
    k.e("s_waitcnt lgkmcnt(0)")
    k.e("s_cmp_ge_u32 s2, 64")
    k.e(f"s_cbranch_scc1 {LY}")
    k.e("s_and_b32 s20, s2, 31")
    for j in range(3):
        k.e(f"v_add_u32 v6, {j*64}, v2")
        k.e("v_min_u32 v6, 159, v6")
        k.e(f"v_lshlrev_b32 v{10+j}, 4, v6")
        k.e("v_bfe_u32 v7, v6, 1, 3")
        k.e("s_movk_i32 s3, 1296")
        k.e("v_mul_lo_u32 v7, v7, s3")
        k.e("v_lshrrev_b32 v8, 4, v6")
        k.e("s_mul_i32 s3, s74, 10")
        k.e("v_add_u32 v8, s3, v8")
        k.e("v_lshl_add_u32 v7, v8, 5, v7")
        k.e("v_and_b32 v8, 1, v6")
        k.e("v_lshl_add_u32 v7, v8, 4, v7")
        k.e(f"v_add_u32 v{13+j}, {LDS_MEMS}, v7")
    k.e("v_min_u32 v9, 9, v2")
    k.e("v_lshlrev_b32 v9, 8, v9")
    k.e("v_add_u32 v9, 252, v9")
    k.e("s_movk_i32 s3, 1296")
    k.e("v_mul_lo_u32 v16, v5, s3")
    k.e("v_lshl_add_u32 v16, v4, 4, v16")
    k.e(f"v_add_u32 v16, {LDS_MEMS}, v16")
    k.e(f"s_mul_i32 s3, s74, {NLDS_FR*1024}")
    k.e("v_lshlrev_b32 v18, 4, v2")
    k.e("v_add_u32 v18, s3, v18")
    k.e("v_mov_b32 v19, v18")
    k.e("s_movk_i32 s3, 400")
    k.e("v_mul_lo_u32 v17, v5, s3")
    k.e(f"v_add_u32 v17, {LDS_EX}, v17")
    k.e(f"s_mul_i32 s30, s74, 2560")
    k.e(f"s_add_u32 s30, s30, {WS_MEM}")
    k.e("s_mov_b32 s29, 0")
    k.e("s_cmp_ge_u32 s2, 32")
    k.e(f"s_cbranch_scc1 {LB}")

    k.e("s_cmp_ge_u32 s74, 2")
    k.e("s_cselect_b32 s12, s14, s12"); k.e("s_cselect_b32 s13, s15, s13")
    srd(k, 64, 12, D*H*E*2)
    k.e("s_and_b32 s3, s74, 1")
    k.e("s_mul_i32 s3, s3, 192")
    k.e("s_mul_i32 s21, s20, 384")
    k.e("s_add_u32 s21, s21, s3")
    k.e("s_mov_b32 s3, 98304")
    k.e("v_mul_lo_u32 v6, v4, s3")
    k.e("v_lshl_add_u32 v6, v3, 2, v6")
    for b in range(3):
        k.e(f"s_add_u32 s22, s21, {b*64}")
        load_block(k, 64, 6, 12288, 2, 22, 20, [lambda kt, b=b: kt*6 + 2*b, lambda kt, b=b: kt*6 + 2*b + 1])
    k.e("s_lshr_b32 s3, s74, 1")
    k.e("s_mul_i32 s3, s3, 3200")
    k.e("s_and_b32 s22, s74, 1")
    k.e("s_mul_i32 s22, s22, 192")
    k.e("s_add_u32 s3, s3, s22")
    k.e("v_lshl_add_u32 v20, v4, 4, v17")
    k.e("v_add_u32 v20, s3, v20")
    k.e("v_lshl_add_u32 v21, v4, 4, v17")
    k.e("s_movk_i32 s3, 12288")
    k.e("v_mul_lo_u32 v22, v3, s3")
    k.e("v_lshl_add_u32 v22, v4, 4, v22")
    k.e("s_mul_i32 s23, s20, 384")
    k.e(f"s_add_u32 s23, s23, {WS_K}")
    k.e("v_mul_u32_u24 v23, 80, v3")
    k.e("v_lshl_add_u32 v24, v4, 4, v23")
    k.e("v_add_u32 v24, 16, v24")
    k.e("v_lshl_add_u32 v23, v4, 3, v23")
    k.e("s_mul_i32 s24, s20, 640")
    k.e(f"s_add_u32 s24, s24, {WS_PB}")
    k.e("v_mul_u32_u24 v25, 384, v3")
    k.e("v_lshl_add_u32 v25, v4, 4, v25")
    k.e("s_mul_i32 s25, s20, 3072")
    k.e(f"s_add_u32 s25, s25, {WS_KM}")
    k.e("v_mov_b32 v26, 0xff800000")
    k.e("s_mul_i32 s3, s20, 3")
    k.e("s_lshr_b32 s3, s3, 2")
    k.e("s_min_u32 s3, s3, 22")
    k.e(f"s_add_u32 s3, s3, {F_QKV + 24}")
    k.e("s_lshl_b32 s3, s3, 2")
    k.e("v_mov_b32 v27, s3")
    k.e("s_mov_b32 s43, 0")
    import boot
    boot.cnt_wait(k, boot.C_CLR, boot.N_CLR, tmp=148)
    k.e("s_barrier")
    la = k.newlabel("Aloop"); lfin = k.newlabel("Afin"); lnext = k.newlabel("Anext")
    k.label(la)
    k.e("s_cmp_lg_u32 s74, 0")
    nokx = k.newlabel("nokx")
    k.e(f"s_cbranch_scc1 {nokx}")
    k.e("s_add_u32 s68, s29, 1")
    wait_flags2(k, 43, 68, 27)
    for u in range(2):
        k.e(f"s_add_u32 s71, s23, {u*16*12288}")
        for t in range(6):
            b = 88 + (u*6 + t)*4
            k.e(f"buffer_load_dwordx4 v[{b}:{b+3}], v22, s[60:63], s71 offen offset:{t*64}")
    k.label(nokx)
    stamp(k, 0)
    poll_mem(k, "A")
    stamp(k, 1)
    proj(k, 6, lambda kt, t: kt*6 + t, 32)
    stamp(k, 2)
    for b in range(3):
        a0 = 32 + 8*b; a1 = a0 + 4
        for r in range(4):
            k.e(f"v_cvt_pk_bf16_f32 v{148+4*b+r}, v{a0+r}, v{a1+r}")
        k.e(f"ds_write_b128 v20, v[{148+4*b}:{151+4*b}] offset:{b*64}")
    k.e("s_waitcnt lgkmcnt(0)")
    k.e("s_barrier")
    k.e("s_cmp_lg_u32 s74, 0")
    k.e(f"s_cbranch_scc1 {lnext}")
    for t in range(6):
        k.e(f"ds_read_b128 v[{32+4*t}:{35+4*t}], v21 offset:{t*64}")
        k.e(f"ds_read_b128 v[{56+4*t}:{59+4*t}], v21 offset:{3200 + t*64}")
    for t in range(6):
        k.e(f"s_waitcnt lgkmcnt({10 - 2*t})")
        for T_ in range(3):
            a = 136 + 4*T_
            kop = f"v[{56+4*t}:{59+4*t}]" if T_ == 0 else f"v[{88+((T_-1)*6+t)*4}:{91+((T_-1)*6+t)*4}]"
            c = "0" if t == 0 else f"v[{a}:{a+3}]"
            k.e(f"v_mfma_f32_16x16x32_bf16 v[{a}:{a+3}], {kop}, v[{32+4*t}:{35+4*t}], {c}")
    k.nop(8)
    c2 = fbits(192 ** -0.5 * 1.4426950408889634)
    for r in range(4):
        k.e(f"v_cndmask_b32 v{136+r}, v{136+r}, v26, s[84:85]")
    k.e("v_max3_f32 v148, v136, v137, v138")
    k.e("v_max3_f32 v149, v139, v140, v141")
    k.e("v_max3_f32 v150, v142, v143, v144")
    k.e("v_max3_f32 v151, v145, v146, v147")
    k.e("v_max3_f32 v148, v148, v149, v150")
    k.e("v_max_f32 v148, v148, v151")
    xred(k, 148, 149, "v_max_f32")
    k.e(f"v_mul_f32 v148, 0x{c2 | 0x80000000:08x}, v148")
    k.e(f"s_mov_b32 s3, 0x{c2:08x}")
    for i in range(12):
        k.e(f"v_fma_f32 v{136+i}, v{136+i}, s3, v148")
    for i in range(12):
        k.e(f"v_exp_f32 v{136+i}, v{136+i}")
    k.e("s_nop 0")
    k.e("v_add_f32 v149, v136, v137")
    for i in range(2, 12):
        k.e(f"v_add_f32 v149, v149, v{136+i}")
    xred(k, 149, 150, "v_add_f32")
    k.e("v_rcp_f32 v149, v149")
    k.e("s_nop 0")
    for i in range(12):
        k.e(f"v_mul_f32 v{136+i}, v{136+i}, v149")
    for i in range(6):
        k.e(f"v_cvt_pk_bf16_f32 v{152+i}, v{136+2*i}, v{137+2*i}")
    for i in range(6):
        k.e(f"v_min_u32 v{152+i}, 0xfffffffe, v{152+i}")
    k.e("s_mov_b64 exec, s[80:81]")
    k.e("buffer_store_dwordx4 v[154:157], v24, s[60:63], s24 offen sc1")
    k.e("s_mov_b64 exec, s[82:83]")
    k.e("buffer_store_dwordx2 v[152:153], v23, s[60:63], s24 offen sc1")
    k.e("s_mov_b64 exec, s[80:81]")
    for t in range(6):
        k.e(f"buffer_store_dwordx4 v[{56+4*t}:{59+4*t}], v25, s[60:63], s25 offen offset:{t*64} sc1")
    k.e("s_mov_b64 exec, -1")
    stamp(k, 3)
    k.label(lnext)
    k.e("s_add_u32 s29, s29, 1")
    k.e("s_add_u32 s30, s30, 10240")
    k.e(f"s_add_u32 s23, s23, {32*12288}")
    k.e(f"s_add_u32 s24, s24, {32*640}")
    k.e(f"s_add_u32 s25, s25, {32*3072}")
    k.e(f"s_cmp_lt_u32 s29, {NS}")
    k.e(f"s_cbranch_scc1 {la}")
    k.e("s_cmp_lg_u32 s74, 0")
    k.e(f"s_cbranch_scc1 {done}")
    k.e("s_waitcnt vmcnt(0)")
    k.e("v_mov_b32 v150, 1")
    k.e("v_mov_b32 v151, 0")
    k.e("s_mov_b64 exec, 1")
    k.e(f"s_mov_b32 s71, {WS_FLAGS + 4*F_ADONE}")
    k.e("buffer_atomic_add v150, v151, s[60:63], s71 offen sc1")
    k.e("s_mov_b64 exec, -1")
    k.e(f"s_branch {done}")

    k.tramp(); done = after[1]
    k.label(LB)
    srd(k, 64, 16, D*H*E*2)
    srd(k, 96, 18, H*E*D*2)
    k.e("s_mov_b32 s3, 98304")
    k.e("v_mul_lo_u32 v6, v4, s3")
    k.e("v_lshl_add_u32 v6, v3, 2, v6")
    k.e("s_mul_i32 s26, s74, 3")
    k.e("s_lshr_b32 s26, s26, 1")
    k.e("s_mul_i32 s21, s20, 384")
    k.e("s_lshl_b32 s3, s26, 6")
    k.e("s_add_u32 s21, s21, s3")
    k.e("s_add_u32 s22, s21, 64")
    odd = k.newlabel("odd"); wl2 = k.newlabel("wl2")
    fv = lambda j: (lambda kt: kt*3 + j)
    k.e("s_bitcmp1_b32 s74, 0")
    k.e(f"s_cbranch_scc1 {odd}")
    load_block(k, 64, 6, 12288, 2, 21, 20, [fv(0), fv(1)])
    load_block(k, 64, 6, 12288, 2, 22, 20, [fv(2), None])
    k.e("s_lshl_b32 s40, s26, 6"); k.e("s_add_u32 s41, s40, 2"); k.e("s_add_u32 s42, s40, 64")
    k.e(f"s_branch {wl2}")
    k.label(odd)
    load_block(k, 64, 6, 12288, 2, 21, 20, [None, fv(0)])
    load_block(k, 64, 6, 12288, 2, 22, 20, [fv(1), fv(2)])
    k.e("s_lshl_b32 s40, s26, 6"); k.e("s_add_u32 s40, s40, 2"); k.e("s_add_u32 s41, s40, 62"); k.e("s_add_u32 s42, s40, 64")
    k.label(wl2)
    fo = lambda t: (lambda kt: 60 + kt*10 + t)
    k.e("s_movk_i32 s3, 10240")
    k.e("v_mul_lo_u32 v6, v4, s3")
    k.e("v_lshl_add_u32 v7, v3, 2, v6")
    k.e("v_lshl_add_u32 v6, v3, 3, v6")
    k.e("s_mul_i32 s27, s74, 160")
    k.e("s_mul_i32 s3, s20, 245760")
    k.e("s_lshl_b32 s21, s27, 1")
    k.e("s_add_u32 s21, s21, s3")
    k.e("s_add_u32 s22, s21, 128")
    k.e("s_add_u32 s23, s21, 256")
    load_block(k, 96, 6, 1280, 4, 21, 6, [fo(0), fo(1), fo(2), fo(3)])
    load_block(k, 96, 6, 1280, 4, 22, 6, [fo(4), fo(5), fo(6), fo(7)])
    load_block(k, 96, 7, 1280, 2, 23, 6, [fo(8), fo(9)])
    k.e("v_lshl_add_u32 v21, v4, 4, v17")
    for j in range(3):
        k.e(f"v_add_u32 v{22+j}, s{40+j}, v21")
    k.e("v_lshlrev_b32 v25, 6, v3")
    k.e("v_lshl_add_u32 v25, v4, 3, v25")
    k.e("v_lshlrev_b32 v26, 5, v3")
    k.e("v_lshl_add_u32 v26, v4, 3, v26")
    k.e("s_mul_i32 s24, s20, 640")
    k.e("s_add_u32 s24, s24, s27")
    k.e("s_lshl_b32 s24, s24, 4")
    k.e(f"s_add_u32 s24, s24, {WS_VOM}")
    boot.cnt_wait(k, boot.C_CLR, boot.N_CLR, tmp=148)
    k.e("s_barrier")
    lb = k.newlabel("Bloop")
    k.label(lb)
    stamp(k, 0)
    poll_mem(k, "B")
    stamp(k, 1)
    proj(k, 3, lambda kt, t: kt*3 + t, 32)
    stamp(k, 2)
    for j in range(3):
        for r in range(4):
            k.e(f"v_cvt_pk_bf16_f32 v{148+r}, v{32+4*j+r}, v{32+4*j+r}")
        for r in range(4):
            k.e(f"ds_write_b16 v{22+j}, v{148+r} offset:{4*r}")
    k.e("s_waitcnt lgkmcnt(0)")
    k.e("s_barrier")
    for t in range(6):
        k.e(f"ds_read_b128 v[{88+4*t}:{91+4*t}], v21 offset:{t*64}")
    wi = 0
    pend = [(kt, t) for kt in range(6) for t in range(10) if wloc(60 + kt*10 + t)[0] == 'l']
    slot = {p: 72 + 4*(i % 4) for i, p in enumerate(pend)}
    issued = 0
    k.e("s_waitcnt lgkmcnt(0)")
    def issue(n):
        nonlocal issued
        while issued < min(n, len(pend)):
            p = pend[issued]; b = slot[p]
            k.e(f"ds_read_b128 v[{b}:{b+3}], v18 offset:{wloc(60 + p[0]*10 + p[1])[1]*1024}")
            issued += 1
    issue(3)
    pos = 0
    for kt in range(6):
        for t in range(10):
            kind, r = wloc(60 + kt*10 + t)
            if kind == 'l':
                issue(pos + 3)
                k.e(f"s_waitcnt lgkmcnt({issued - pos - 1})")
                wop = f"v[{slot[(kt,t)]}:{slot[(kt,t)]+3}]"
                pos += 1
            else:
                wop = reg(r, 4)
            a = 112 + 4*t
            c = "0" if kt == 0 else f"v[{a}:{a+3}]"
            k.e(f"v_mfma_f32_16x16x32_bf16 v[{a}:{a+3}], v[{88+4*kt}:{91+4*kt}], {wop}, {c}")
    k.nop(8)
    k.e("s_mov_b32 exec_lo, -1")
    k.e("s_mov_b32 exec_hi, 0")
    for t in range(10):
        a = 112 + 4*t
        d = 152 + 2*(t % 4)
        k.e(f"v_cvt_pk_bf16_f32 v{d}, v{a}, v{a+1}")
        k.e(f"v_cvt_pk_bf16_f32 v{d+1}, v{a+2}, v{a+3}")
        k.e(f"v_min_u32 v{d}, 0xfffffffe, v{d}")
        k.e(f"v_min_u32 v{d+1}, 0xfffffffe, v{d+1}")
        if t < 8: off = (t//4)*1024 + (t%4)*16; vo = 25
        else: off = 2048 + (t-8)*16; vo = 26
        k.e(f"buffer_store_dwordx2 v[{d}:{d+1}], v{vo}, s[60:63], s24 offen offset:{off} sc1")
    k.e("s_mov_b64 exec, -1")
    stamp(k, 3)
    k.e("s_add_u32 s29, s29, 1")
    k.e("s_add_u32 s30, s30, 10240")
    k.e(f"s_add_u32 s24, s24, {32*640*16}")
    k.e(f"s_cmp_lt_u32 s29, {NS}")
    k.e(f"s_cbranch_scc1 {lb}")
    k.e(f"s_branch {done}")

    k.tramp(); done = after[2]
    k.label(LY)
    k.e("s_sub_u32 s20, s2, 64")
    k.e("v_mul_u32_u24 v6, 80, v5")
    k.e("s_mul_i32 s3, s74, 5120")
    k.e("v_add_u32 v6, s3, v6")
    k.e("v_lshl_add_u32 v7, v4, 4, v6")
    k.e("v_add_u32 v7, 16, v7")
    k.e("v_mul_u32_u24 v8, 640, v4")
    k.e("v_add_u32 v6, v8, v6")
    k.e("s_lshl_b32 s21, s20, 4")
    k.e("s_add_u32 s21, s21, s3")
    k.e("v_add_u32 v9, s21, v3")
    k.e("v_add_u32 v10, v8, v9")
    k.e("v_lshlrev_b32 v10, 4, v10")
    k.e("v_lshlrev_b32 v9, 6, v9")
    k.e("v_lshl_add_u32 v9, v4, 4, v9")
    k.e(f"s_mov_b32 s22, {WS_PB}")
    k.e(f"s_mov_b32 s23, {WS_VOM}")
    k.e(f"s_mov_b32 s24, {WS_VOX}")
    k.e("v_lshlrev_b32 v11, 4, v0")
    k.e("v_lshlrev_b32 v12, 4, v2")
    k.e("v_lshlrev_b32 v13, 5, v3")
    k.e("v_lshl_add_u32 v13, v4, 3, v13")
    k.e("s_lshl_b32 s25, s20, 8")
    k.e(f"s_add_u32 s25, s25, {WS_MEM + 10240}")
    k.e("s_mov_b32 s29, 0")
    k.e("s_mov_b32 s43, 0")
    k.e("v_and_b32 v17, 7, v2")
    k.e("s_lshl_b32 s3, s74, 3")
    k.e("v_add_u32 v17, s3, v17")
    k.e("v_mul_u32_u24 v15, 640, v17")
    k.e(f"v_add_u32 v15, {WS_PB + 636}, v15")
    k.e("v_mul_u32_u24 v18, 640, v17")
    k.e("s_lshl_b32 s3, s20, 4")
    k.e("v_add_u32 v18, s3, v18")
    k.e("v_lshlrev_b32 v18, 4, v18")
    k.e(f"v_add_u32 v18, {WS_VOM + 15*16 + 12}, v18")
    k.e("v_cndmask_b32 v15, v18, v15, s[80:81]")
    k.e(f"v_mov_b32 v16, {32*640*16}")
    k.e(f"v_mov_b32 v18, {32*640}")
    k.e("v_cndmask_b32 v16, v16, v18, s[80:81]")
    k.e("v_and_b32 v14, 31, v2")
    k.e(f"v_add_u32 v14, {F_VO}, v14")
    k.e("v_lshlrev_b32 v14, 2, v14")
    boot.cnt_wait(k, boot.C_CLR, boot.N_CLR, tmp=148)
    ly = k.newlabel("Yloop"); yp = k.newlabel("Ypoll"); yok = k.newlabel("Yok"); ynext = k.newlabel("Ynext")
    k.label(ly)
    k.e("s_add_u32 s68, s29, 1")
    wait_flagsN(k, 43, 68, 14)
    for t in range(2, 10):
        k.e(f"s_add_u32 s71, s24, {(t-2)*640*64}")
        k.e(f"buffer_load_dwordx4 v[{40+4*t}:{43+4*t}], v9, s[60:63], s71 offen")
    stamp(k, 0)
    k.e("s_mov_b32 s31, 0")
    ypp = k.newlabel("ypp"); yppo = k.newlabel("yppo")
    k.label(ypp)
    k.e("buffer_load_dword v121, v15, s[60:63], 0 offen sc1")
    k.e("s_add_u32 s31, s31, 1")
    k.e(f"s_cmp_ge_u32 s31, {SPIN_LIMIT*4}")
    k.e(f"s_cbranch_scc1 {yppo}")
    k.e("s_waitcnt vmcnt(0)")
    k.e("v_cmp_eq_u32 vcc, -1, v121")
    k.e(f"s_cbranch_vccnz {ypp}")
    k.label(yppo)
    k.e("v_add_u32 v15, v15, v16")
    k.e("s_mov_b32 s31, 0")
    k.label(yp)
    for t in range(2):
        k.e(f"s_add_u32 s71, s23, {t*4*640*16}")
        k.e(f"buffer_load_dwordx4 v[{40+4*t}:{43+4*t}], v10, s[60:63], s71 offen sc1")
        k.e(f"buffer_load_dwordx4 v[{80+4*t}:{83+4*t}], v6, s[60:63], s22 offen offset:{t*2560} sc1")
    for t in range(2, 10):
        k.e(f"s_add_u32 s71, s22, {(t-2)*640}")
        k.e(f"buffer_load_dwordx4 v[{80+4*t}:{83+4*t}], v7, s[60:63], s71 offen sc1")
    k.e("s_waitcnt vmcnt(0)")
    regs = list(range(40, 48)) + list(range(80, 120))
    k.e(f"v_max3_u32 v120, v{regs[0]}, v{regs[1]}, v{regs[2]}")
    i = 3
    while i < len(regs):
        if i + 1 < len(regs):
            k.e(f"v_max3_u32 v120, v120, v{regs[i]}, v{regs[i+1]}"); i += 2
        else:
            k.e(f"v_max_u32 v120, v120, v{regs[i]}"); i += 1
    k.e("v_cmp_eq_u32 vcc, -1, v120")
    k.e(f"s_cbranch_vccz {yok}")
    k.e("s_add_u32 s31, s31, 1")
    k.e(f"s_cmp_lt_u32 s31, {SPIN_LIMIT}")
    k.e(f"s_cbranch_scc1 {yp}")
    k.label(yok)
    stamp(k, 1)
    for t in range(10):
        c = "0" if t == 0 else "v[124:127]"
        k.e(f"v_mfma_f32_16x16x32_bf16 v[124:127], v[{40+4*t}:{43+4*t}], v[{80+4*t}:{83+4*t}], {c}")
    k.nop(8)
    k.e("ds_write_b128 v11, v[124:127]")
    k.e("s_waitcnt lgkmcnt(0)")
    k.e("s_barrier")
    k.e("s_cmp_lg_u32 s74, 0")
    k.e(f"s_cbranch_scc1 {ynext}")
    for w in range(1, 4):
        k.e(f"ds_read_b128 v[{124+4*w}:{127+4*w}], v12 offset:{w*1024}")
    k.e("s_waitcnt lgkmcnt(0)")
    for r in range(4):
        k.e(f"v_add_f32 v{124+r}, v{124+r}, v{128+r}")
        k.e(f"v_add_f32 v{132+r}, v{132+r}, v{136+r}")
    for r in range(4):
        k.e(f"v_add_f32 v{124+r}, v{124+r}, v{132+r}")
    k.e("v_cvt_pk_bf16_f32 v140, v124, v125")
    k.e("v_cvt_pk_bf16_f32 v141, v126, v127")
    k.e("v_min_u32 v140, 0xfffffffe, v140")
    k.e("v_min_u32 v141, 0xfffffffe, v141")
    k.e("s_mov_b64 exec, s[80:81]")
    k.e("buffer_store_dwordx2 v[140:141], v13, s[60:63], s25 offen sc1")
    k.e("s_mov_b64 exec, -1")
    stamp(k, 3)
    k.label(ynext)
    k.e("s_add_u32 s29, s29, 1")
    k.e(f"s_add_u32 s22, s22, {32*640}")
    k.e(f"s_add_u32 s23, s23, {32*640*16}")
    k.e(f"s_add_u32 s24, s24, {32*640*64}")
    k.e("s_add_u32 s25, s25, 10240")
    k.e(f"s_cmp_lt_u32 s29, {NS}")
    k.e(f"s_cbranch_scc1 {ly}")
    k.e(f"s_branch {done}")
```

```python
import sys
from asmlib import *

NAME = "adaLN_cond__memory_aug_recurrent_mem_tr__glu_gated_swiglu__prompt"
T, D, H, E, M, SEG, NS, F = 2048, 640, 32, 192, 8, 32, 64, 1536

KA_X, KA_MEM0, KA_WQ, KA_WK, KA_WV, KA_WO = 0, 8, 16, 24, 32, 40
KA_W1, KA_W3, KA_W2, KA_C, KA_WMOD, KA_OUT, KA_DBG, KA_WS = 64, 72, 80, 88, 96, 104, 112, 120

def al(x): return (x + 4095) // 4096 * 4096
WS_MOD = 0
WS_H1F = 0x4000
WS_H2F = al(WS_H1F + T*D*2)
WS_X1  = al(WS_H2F + T*D*2)
WS_Q   = al(WS_X1 + T*D*2)
WS_K   = al(WS_Q + T*H*E*2)
WS_VF  = al(WS_K + T*H*E*2)
WS_VOX = al(WS_VF + T*H*E*2)
WS_VOM = al(WS_VOX + NS*H*D*32*2)
WS_PB  = WS_VOM + NS*H*D*8*2
WS_MEM = WS_PB + NS*H*640
WS_KM  = al(WS_MEM + (NS+1)*10240)
WS_G   = al(WS_KM + NS*H*8*E*2)
WS_END = al(WS_G + T*F*2)
WS_ACC = WS_END + 0x200000
WS_SIZE = 268435456
assert WS_END <= WS_SIZE

def srd(k, d, base, nbytes):
    k.e(f"s_mov_b32 s{d}, s{base}")
    k.e(f"s_and_b32 s{d+1}, s{base+1}, 0xffff")
    k.e(f"s_mov_b32 s{d+2}, {nbytes}")
    k.e(f"s_mov_b32 s{d+3}, 0x00020000")

def k_mod():
    k = K("mod_kernel")
    done = k.newlabel("done")
    k.e("s_cmp_ge_u32 s2, 15")
    k.e(f"s_cbranch_scc1 {done}")
    k.e(f"s_load_dwordx2 s[4:5], s[0:1], {KA_C}")
    k.e(f"s_load_dwordx2 s[6:7], s[0:1], {KA_WMOD}")
    k.e(f"s_load_dwordx2 s[8:9], s[0:1], {KA_WS}")
    k.e("v_lshrrev_b32 v1, 6, v0")
    k.e("v_and_b32 v2, 63, v0")
    k.e("s_nop 0")
    k.e("v_readfirstlane_b32 s10, v1")
    k.e("s_waitcnt lgkmcnt(0)")
    srd(k, 12, 4, 1280)
    srd(k, 16, 6, 640*7680)
    srd(k, 60, 8, WS_SIZE)
    k.e("s_mul_i32 s11, s10, 40")
    k.e("v_add_u32 v3, s11, v2")
    k.e("v_lshlrev_b32 v3, 1, v3")
    k.e("buffer_load_ushort v4, v3, s[12:15], 0 offen")
    k.e("s_lshl_b32 s3, s2, 9")
    k.e("v_lshlrev_b32 v6, 3, v2")
    k.e("v_add_u32 v6, s3, v6")
    k.e("s_mul_i32 s64, s11, 7680")
    for i in range(40):
        k.e(f"buffer_load_dwordx2 v[{20+2*i}:{21+2*i}], v6, s[16:19], s64 offen")
        k.e("s_add_u32 s64, s64, 7680")
    k.e("s_waitcnt vmcnt(40)")
    k.e("v_lshlrev_b32 v4, 16, v4")
    k.e("v_mul_f32 v5, 0xbfb8aa3b, v4")
    k.e("v_exp_f32 v5, v5")
    k.e("s_nop 0")
    k.e("v_add_f32 v5, 1.0, v5")
    k.e("v_rcp_f32 v5, v5")
    k.e("s_nop 0")
    k.e("v_mul_f32 v5, v4, v5")
    k.e("v_cvt_pk_bf16_f32 v5, v5, v5")
    k.e("v_lshlrev_b32 v5, 16, v5")
    k.e("s_nop 0")
    for i in range(40):
        k.e(f"v_readlane_b32 s{20+i}, v5, {i}")
    for j in range(4):
        k.e(f"v_mov_b32 v{8+j}, 0")
    k.e("s_waitcnt vmcnt(0)")
    for i in range(40):
        a, b = 20+2*i, 21+2*i
        k.e(f"v_lshlrev_b32 v12, 16, v{a}")
        k.e(f"v_and_b32 v13, 0xffff0000, v{a}")
        k.e(f"v_lshlrev_b32 v14, 16, v{b}")
        k.e(f"v_and_b32 v15, 0xffff0000, v{b}")
        for j in range(4):
            k.e(f"v_fmac_f32 v{8+j}, s{20+i}, v{12+j}")
    k.e("v_lshlrev_b32 v16, 4, v0")
    k.e("ds_write_b128 v16, v[8:11]")
    k.e("s_waitcnt lgkmcnt(0)")
    k.e("s_barrier")
    k.e("s_cmp_ge_u32 s10, 4")
    k.e(f"s_cbranch_scc1 {done}")
    k.e("v_lshlrev_b32 v16, 2, v0")
    for w in range(16):
        k.e(f"ds_read_b32 v{20+w}, v16 offset:{w*1024}")
    k.e("s_waitcnt lgkmcnt(0)")
    for w in range(1, 16):
        k.e(f"v_add_f32 v20, v20, v{20+w}")
    k.e("v_cvt_pk_bf16_f32 v20, v20, v20")
    k.e("v_lshlrev_b32 v20, 16, v20")
    k.e("s_lshl_b32 s3, s2, 8")
    k.e("v_add_u32 v17, s3, v0")
    k.e("v_add_f32 v21, 1.0, v20")
    k.e("v_cvt_pk_bf16_f32 v21, v21, v21")
    k.e("v_lshlrev_b32 v21, 16, v21")
    k.e("v_subrev_u32 v18, 640, v17")
    k.e("v_subrev_u32 v19, 2560, v17")
    k.e("v_min_u32 v18, v18, v19")
    k.e("v_cmp_gt_u32 vcc, 640, v18")
    k.e("s_nop 1")
    k.e("v_cndmask_b32 v20, v20, v21, vcc")
    k.e("v_lshlrev_b32 v17, 2, v17")
    k.e(f"buffer_store_dword v20, v17, s[60:63], 0 offen")
    k.label(done)
    k.e("s_endpgm")
    return kernel_text(k, 104, 80), "; @launch kernel=mod_kernel grid=(15,1,1) block=(1024,1,1) lds=16384"

def k_ln(name, first):
    k = K(name)
    done = k.newlabel("done")
    clr = k.newlabel("clr")
    NCLR = 224
    k.e(f"s_load_dwordx2 s[4:5], s[0:1], {KA_X}")
    k.e(f"s_load_dwordx2 s[6:7], s[0:1], {KA_MEM0}")
    k.e(f"s_load_dwordx2 s[8:9], s[0:1], {KA_WS}")
    k.e(f"s_cmp_ge_u32 s2, {32 + (NCLR if first else 0)}")
    k.e(f"s_cbranch_scc1 {done}")
    k.e("s_waitcnt lgkmcnt(0)")
    srd(k, 60, 8, WS_SIZE)
    if first:
        srd(k, 12, 4, T*D*2)
        k.e("s_cmp_ge_u32 s2, 32")
        k.e(f"s_cbranch_scc1 {clr}")
    k.e("v_lshrrev_b32 v1, 6, v0")
    k.e("v_and_b32 v2, 63, v0")
    k.e("v_and_b32 v3, 15, v0")
    k.e("v_bfe_u32 v4, v0, 4, 2")
    k.e("s_nop 0")
    k.e("v_readfirstlane_b32 s10, v1")
    k.e("s_lshl_b32 s11, s2, 2")
    k.e("s_add_u32 s11, s11, s10")
    k.e("s_lshl_b32 s3, s11, 4")
    k.e("v_add_u32 v5, s3, v3")
    k.e("s_movk_i32 s3, 1280")
    k.e("v_mul_lo_u32 v5, v5, s3")
    k.e("v_lshl_add_u32 v5, v4, 4, v5")
    if first:
        for kt in range(20):
            k.e(f"buffer_load_dwordx4 v[{40+4*kt}:{43+4*kt}], v5, s[12:15], 0 offen offset:{kt*64}")
    else:
        k.e(f"s_mov_b32 s3, {WS_X1}")
        for kt in range(20):
            k.e(f"buffer_load_dwordx4 v[{40+4*kt}:{43+4*kt}], v5, s[60:63], s3 offen offset:{kt*64}")
    k.e("v_mov_b32 v6, 0")
    k.e("v_mov_b32 v7, 0")
    k.e("s_waitcnt vmcnt(0)")
    for r in range(40, 120):
        k.e(f"v_lshlrev_b32 v8, 16, v{r}")
        k.e(f"v_and_b32 v9, 0xffff0000, v{r}")
        k.e("v_add_f32 v6, v6, v8")
        k.e("v_add_f32 v7, v7, v9")
    k.e("v_add_f32 v6, v6, v7")
    def xred(v, tmp):
        k.e(f"v_mov_b32 v{tmp}, v{v}")
        k.e("s_nop 1")
        k.e(f"v_permlane16_swap_b32 v{v}, v{tmp}")
        k.e("s_nop 1")
        k.e(f"v_add_f32 v{v}, v{v}, v{tmp}")
        k.e(f"v_mov_b32 v{tmp}, v{v}")
        k.e("s_nop 1")
        k.e(f"v_permlane32_swap_b32 v{v}, v{tmp}")
        k.e("s_nop 1")
        k.e(f"v_add_f32 v{v}, v{v}, v{tmp}")
    xred(6, 7)
    k.e(f"v_mul_f32 v6, 0x{(lambda f: __import__('struct').unpack('<I', __import__('struct').pack('<f', f))[0])(1.0/640):08x}, v6")
    k.e("v_mov_b32 v10, 0")
    k.e("v_mov_b32 v11, 0")
    for r in range(40, 120):
        k.e(f"v_lshlrev_b32 v8, 16, v{r}")
        k.e(f"v_and_b32 v9, 0xffff0000, v{r}")
        k.e("v_sub_f32 v8, v8, v6")
        k.e("v_sub_f32 v9, v9, v6")
        k.e("v_fmac_f32 v10, v8, v8")
        k.e("v_fmac_f32 v11, v9, v9")
    k.e("v_add_f32 v10, v10, v11")
    xred(10, 11)
    k.e(f"v_mov_b32 v11, 0x3727c5ac")
    k.e(f"v_fmac_f32 v11, 0x{(lambda f: __import__('struct').unpack('<I', __import__('struct').pack('<f', f))[0])(1.0/640):08x}, v10")
    k.e("v_rsq_f32 v11, v11")
    sh = (0 if first else 3) * 2560
    sc = sh + 2560
    k.e("v_lshlrev_b32 v12, 5, v4")
    k.e("s_mul_i32 s3, s11, 20480")
    k.e(f"s_add_u32 s3, s3, {WS_H1F if first else WS_H2F}")
    k.e("v_lshlrev_b32 v13, 4, v2")
    for kt in range(20):
        b = 120 + (kt % 2) * 16
        k.e(f"s_mov_b32 s21, {sh + kt*128}")
        k.e(f"buffer_load_dwordx4 v[{b}:{b+3}], v12, s[60:63], s21 offen")
        k.e(f"buffer_load_dwordx4 v[{b+4}:{b+7}], v12, s[60:63], s21 offen offset:16")
        k.e(f"s_mov_b32 s20, {sc + kt*128}")
        k.e(f"buffer_load_dwordx4 v[{b+8}:{b+11}], v12, s[60:63], s20 offen")
        k.e(f"buffer_load_dwordx4 v[{b+12}:{b+15}], v12, s[60:63], s20 offen offset:16")
        k.e("s_waitcnt vmcnt(0)")
        for d in range(4):
            r = 40 + 4*kt + d
            k.e(f"v_lshlrev_b32 v8, 16, v{r}")
            k.e(f"v_and_b32 v9, 0xffff0000, v{r}")
            k.e("v_sub_f32 v8, v8, v6")
            k.e("v_sub_f32 v9, v9, v6")
            k.e("v_mul_f32 v8, v8, v11")
            k.e("v_mul_f32 v9, v9, v11")
            k.e(f"v_fma_f32 v8, v8, v{b+8+2*d}, v{b+2*d}")
            k.e(f"v_fma_f32 v9, v9, v{b+9+2*d}, v{b+1+2*d}")
            k.e(f"v_cvt_pk_bf16_f32 v{r}, v8, v9")
        k.e(f"buffer_store_dwordx4 v[{40+4*kt}:{43+4*kt}], v13, s[60:63], s3 offen")
        k.e("s_add_u32 s3, s3, 1024")
    k.e(f"s_branch {done}")
    if first:
        k.label(clr)
        total = (WS_MEM + 65*10240) - WS_VOM
        per = (total + NCLR*4096 - 1) // (NCLR*4096)
        k.e("s_sub_u32 s10, s2, 32")
        k.e(f"s_mul_i32 s11, s10, {per*4096}")
        k.e(f"s_add_u32 s11, s11, {WS_VOM}")
        k.e("v_lshlrev_b32 v1, 4, v0")
        k.e("v_add_u32 v1, s11, v1")
        for j in range(4):
            k.e(f"v_mov_b32 v{4+j}, -1")
        k.e("s_mov_b32 s64, s60")
        k.e("s_mov_b32 s65, s61")
        k.e(f"s_mov_b32 s66, {WS_MEM + 65*10240}")
        k.e("s_mov_b32 s67, 0x00020000")
        k.e(f"s_mov_b32 s20, {WS_MEM}")
        k.e("s_mov_b64 s[22:23], exec")
        for i in range(per):
            k.e("v_subrev_u32 v2, s20, v1")
            k.e("v_cmp_le_u32 vcc, 0x2800, v2")
            k.e("s_and_b64 exec, s[22:23], vcc")
            k.e("buffer_store_dwordx4 v[4:7], v1, s[64:67], 0 offen")
            k.e("s_mov_b64 exec, s[22:23]")
            k.e("v_add_u32 v1, 0x1000, v1")
        k.e(f"s_mov_b32 s66, {WS_ACC + 64*32*640*4}")
        k.e(f"s_mul_i32 s11, s10, {6*4096}")
        k.e(f"s_add_u32 s11, s11, {WS_ACC}")
        k.e("v_lshlrev_b32 v1, 4, v0")
        k.e("v_add_u32 v1, s11, v1")
        for j in range(4):
            k.e(f"v_mov_b32 v{8+j}, 0")
        for i in range(6):
            k.e(f"buffer_store_dwordx4 v[8:11], v1, s[64:67], 0 offen")
            k.e("v_add_u32 v1, 0x1000, v1")
        k.e("s_cmp_lg_u32 s2, 32")
        k.e(f"s_cbranch_scc1 {done}")
        srd(k, 64, 6, 10240)
        for rep in range(3):
            k.e(f"v_add_u32 v8, {rep*256}, v0")
            k.e("v_lshlrev_b32 v9, 4, v8")
            k.e("buffer_load_dwordx4 v[12:15], v9, s[64:67], 0 offen")
            k.e("v_mul_u32_u24 v10, 205, v8")
            k.e("v_lshrrev_b32 v10, 14, v10")
            k.e("v_mul_u32_u24 v11, 80, v10")
            k.e("v_sub_u32 v11, v8, v11")
            k.e("v_lshrrev_b32 v16, 1, v11")
            k.e("v_and_b32 v17, 1, v11")
            k.e("v_lshlrev_b32 v16, 8, v16")
            k.e("v_lshl_add_u32 v16, v10, 5, v16")
            k.e("v_lshl_add_u32 v16, v17, 4, v16")
            k.e("v_cmp_gt_u32 vcc, 640, v8")
            k.e("s_and_b64 exec, s[22:23], vcc")
            k.e("s_waitcnt vmcnt(0)")
            k.e(f"buffer_store_dwordx4 v[12:15], v16, s[60:63], s20 offen")
            k.e("s_mov_b64 exec, s[22:23]")
            k.e("s_nop 1")
        k.e("v_lshlrev_b32 v8, 4, v0")
        for j in range(4):
            k.e(f"v_mov_b32 v{12+j}, 0")
        k.e(f"s_mov_b32 s20, {WS_END + 0x100000}")
        k.e("buffer_store_dwordx4 v[12:15], v8, s[60:63], s20 offen")
    k.label(done)
    k.e("s_endpgm")
    g = 32 + (NCLR if first else 0)
    return kernel_text(k, 160, 80), f"; @launch kernel={name} grid=({g},1,1) block=(256,1,1) lds=0"

HEADER = open("cdna_kernels/" + NAME + ".s.ref").read().split("; Override launch geometry")[0]

def build(kernels):
    launches = [l for _, l in kernels]
    seen = set(); body = []
    for t, l in kernels:
        nm = l.split("kernel=")[1].split()[0]
        if nm in seen: continue
        seen.add(nm); body.append(t)
    out = HEADER + "\n".join(launches) + "\n" + '.amdgcn_target "amdgcn-amd-amdhsa--gfx950"\n' + "\n".join(body)
    return out

if __name__ == "__main__":
    import os
    if os.environ.get("V1"):
        import kernels2
        ks = kernels2.all_kernels()
    else:
        import mega2
        ks = [mega2.k_mega()]
    txt = build(ks)
    path = sys.argv[1] if len(sys.argv) > 1 else "cdna_kernels/" + NAME + ".s"
    open(path, "w").write(txt)
    print("wrote", path, len(txt))
```
